```python
import torch

def _softmax(x, axis=-1):
    return torch.softmax(x, dim=axis)
def _gelu(x):
    return torch.nn.functional.gelu(x, approximate="tanh")
def _silu(x):
    return torch.nn.functional.silu(x)
def _sigmoid(x):
    return torch.sigmoid(x)
def _layernorm(x, axis=-1, eps=1e-5):
    m = x.mean(dim=axis, keepdim=True)
    v = x.var(dim=axis, keepdim=True, unbiased=False)
    return (x - m) / torch.sqrt(v + eps)
def _scatter_add(tgt, idx, src, axis=0):
    return tgt.clone().index_add_(axis, idx, src)
def _segment_sum(src, seg, n):
    out = torch.zeros((n,) + src.shape[1:], dtype=src.dtype)
    return out.index_add_(0, seg, src)
def _pad(x, pw):
    flat = tuple(v for pair in reversed(pw) for v in pair)
    return torch.nn.functional.pad(x, flat)

kernel_name = 'sequential_preLN__sliding_block__dense_activation_gelu__prompt'

def setup_inputs():

    _w = (lambda a: (lambda t: t.to(torch.bfloat16) if t.is_floating_point() else t)(torch.as_tensor(a)))
    def _A_setup():
        B, S, D = 1, 2048, 640
        return {
            "x": _w((lambda *s: torch.randn(*s, dtype=torch.bfloat16) * 0.05)(B, S, D)),
            "wqkv": _w((lambda *s: torch.randn(*s, dtype=torch.bfloat16) * 0.05)(D, 3 * D)),
            "wo": _w((lambda *s: torch.randn(*s, dtype=torch.bfloat16) * 0.05)(D, D)),
        }
    _A_in = _A_setup()

    def _B_setup():
        B, S, D, F = 1, 2048, 640, 1728
        return {
            "x": _w((lambda *s: torch.randn(*s, dtype=torch.bfloat16) * 0.05)(B, S, D)),
            "w1": _w((lambda *s: torch.randn(*s, dtype=torch.bfloat16) * 0.8)(D, F) * (D ** -0.5)),
            "b1": _w((lambda *s: torch.randn(*s, dtype=torch.bfloat16) * 0.8)(F) * 0.01),
            "w2": _w((lambda *s: torch.randn(*s, dtype=torch.bfloat16) * 0.8)(F, D) * (F ** -0.5)),
            "b2": _w((lambda *s: torch.randn(*s, dtype=torch.bfloat16) * 0.8)(D) * 0.01),
        }
    _B_in = _B_setup()

    return {
        "A_x": _A_in["x"],
        "A_wqkv": _A_in["wqkv"],
        "A_wo": _A_in["wo"],
        "B_x": _B_in["x"],
        "B_w1": _B_in["w1"],
        "B_b1": _B_in["b1"],
        "B_w2": _B_in["w2"],
        "B_b2": _B_in["b2"],
    }

def reference(A_x, A_wqkv, A_wo, B_x, B_w1, B_b1, B_w2, B_b2):
    def _A_ref(x, wqkv, wo):
        B, S, D = x.shape
        H = 32; Dh = D // H; W = 256
        qkv = (lambda x, *d: x.permute(*d))((x @ wqkv).reshape(B, S, 3, H, Dh), 2, 0, 3, 1, 4)
        q, k, v = qkv[0], qkv[1], qkv[2]
        scores = torch.einsum("bhqd,bhkd->bhqk", q, k) * (Dh ** -0.5)
        idx = torch.arange(S)
        mask = (idx[:, None] - idx[None, :] >= 0) & (idx[:, None] - idx[None, :] < W)
        scores = torch.where(mask[None, None], scores, -1e9)
        p = _softmax(scores, axis=-1)
        o = torch.einsum("bhqk,bhkd->bhqd", p, v)
        return (lambda x, *d: x.permute(*d))(o, 0, 2, 1, 3).reshape(B, S, D) @ wo

    def _B_ref(x, w1, b1, w2, b2):
        h = torch.einsum("bsd,df->bsf", x, w1) + b1
        h = _gelu(h)
        return torch.einsum("bsf,fd->bsd", h, w2) + b2

    x = A_x
    h = x + _A_ref(_layernorm(x, axis=-1), A_wqkv, A_wo)
    h2 = h + _B_ref(_layernorm(h, axis=-1), B_w1, B_b1, B_w2, B_b2)
    return h2
```

```python
import re

def _regs(tok):
    tok = tok.strip()
    m = re.fullmatch(r'([vsa])(\d+)', tok)
    if m: return [(m.group(1), int(m.group(2)))]
    m = re.fullmatch(r'([vsa])\[(\d+):(\d+)\]', tok)
    if m: return [(m.group(1), i) for i in range(int(m.group(2)), int(m.group(3)) + 1)]
    if tok == 'vcc': return [('s', 106), ('s', 107)]
    if tok == 'vcc_lo': return [('s', 106)]
    if tok == 'vcc_hi': return [('s', 107)]
    if tok == 'm0': return [('s', 124)]
    if tok == 'exec': return [('s', 126), ('s', 127)]
    if tok in ('exec_lo',): return [('s', 126)]
    if tok in ('exec_hi',): return [('s', 127)]
    m = re.fullmatch(r'-?\|?([vsa]\d+)\|?', tok)
    if m: return _regs(m.group(1))
    m = re.fullmatch(r'(?:neg|abs)\((.*)\)', tok)
    if m: return _regs(m.group(1))
    return []

TRANS = ('v_exp_f32', 'v_log_f32', 'v_rcp_f32', 'v_rsq_f32', 'v_sqrt_f32', 'v_sin_f32', 'v_cos_f32', 'v_rcp_iflag_f32')

class Ins:
    __slots__ = ('text', 'op', 'dst', 'src', 'kind', 'passes', 'ops')
    def __init__(self, text):
        self.text = text
        t = text.split(';')[0].strip()
        parts = t.split(None, 1)
        self.op = parts[0]
        ops = []
        if len(parts) > 1:
            depth = 0; cur = ''
            for ch in parts[1]:
                if ch == '[': depth += 1
                if ch == ']': depth -= 1
                if ch == ',' and depth == 0:
                    ops.append(cur.strip()); cur = ''
                else: cur += ch
            ops.append(cur.strip())
        if ops:
            last = ops[-1].split()
            ops[-1] = last[0] if last else ''
            mods = last[1:]
        else: mods = []
        self.ops = ops
        op = self.op
        self.passes = 0
        self.dst = []; self.src = []
        if op.startswith('v_mfma'):
            self.kind = 'mfma'
            self.passes = 8 if '32x32' in op else 4
            self.dst = _regs(ops[0]); self.src = [_regs(o) for o in ops[1:4]]
        elif op.startswith('v_'):
            self.kind = 'valu'
            base = op.replace('_e32', '').replace('_e64', '').replace('_dpp', '')
            if base.startswith('v_cmp'):
                self.dst = _regs(ops[0]); self.src = [r for o in ops[1:] for r in _regs(o)]
            elif base in ('v_permlane32_swap_b32', 'v_permlane16_swap_b32'):
                self.dst = _regs(ops[0]) + _regs(ops[1]); self.src = self.dst[:]
            elif base in ('v_add_co_u32', 'v_sub_co_u32', 'v_addc_co_u32', 'v_subb_co_u32'):
                self.dst = _regs(ops[0]) + _regs(ops[1]); self.src = [r for o in ops[2:] for r in _regs(o)]
            else:
                self.dst = _regs(ops[0]); self.src = [r for o in ops[1:] for r in _regs(o)]
                if base in ('v_fmac_f32', 'v_dot2c_f32_bf16', 'v_writelane_b32', 'v_pk_fmac_f16'): self.src += self.dst
                if base == 'v_cndmask_b32' and len(ops) == 3: self.src += _regs('vcc')
            if '_dpp' in op or any(m.startswith(('row_', 'quad_perm', 'wave_')) for m in mods): self.kind = 'dpp'
        elif op.startswith(('buffer_', 'global_', 'flat_', 'scratch_')):
            self.kind = 'vmem'
            allr = [_regs(o) for o in ops]
            if 'store' in op or ('atomic' in op and 'sc0' not in mods):
                self.src = [r for x in allr for r in x]
            elif 'lds' in mods or op.startswith('global_load_lds'):
                self.src = [r for x in allr for r in x] + [('s', 124)]; self.kind = 'dma'
            elif op in ('buffer_wbl2', 'buffer_inv'):
                pass
            else:
                self.dst = allr[0]; self.src = [r for x in allr[1:] for r in x]
        elif op.startswith('ds_'):
            self.kind = 'ds'
            allr = [_regs(o) for o in ops]
            if op.startswith(('ds_read', 'ds_bpermute', 'ds_permute', 'ds_swizzle')):
                self.dst = allr[0]; self.src = [r for x in allr[1:] for r in x]
            else:
                self.src = [r for x in allr for r in x]
        elif op.startswith('s_'):
            self.kind = 'salu'
            if op in ('s_nop', 's_waitcnt', 's_barrier', 's_endpgm', 's_branch', 's_setprio', 's_sleep') or op.startswith('s_cbranch'):
                pass
            elif op.startswith('s_cmp') or op.startswith('s_bitcmp'):
                self.src = [r for o in ops for r in _regs(o)]
            elif op.startswith(('s_load', 's_memtime', 's_memrealtime', 's_getreg')):
                self.dst = _regs(ops[0]); self.src = [r for o in ops[1:] for r in _regs(o)]
            else:
                self.dst = _regs(ops[0]); self.src = [r for o in ops[1:] for r in _regs(o)]
        else:
            self.kind = 'other'
    def states(self):
        if self.op == 's_nop': return int(self.ops[0], 0) + 1
        return 1

def flat(x):
    out = []
    for e in x:
        if isinstance(e, list): out += e
        else: out.append(e)
    return out

def need(prev, cur):
    n = 0
    pk, ck = prev.kind, cur.kind
    pd = set(prev.dst)
    cs = set(flat(cur.src)); cd = set(cur.dst)
    valu_like = ('valu', 'dpp')
    if pk in valu_like:
        vd = {r for r in pd if r[0] in 'va'}
        sd = {r for r in pd if r[0] == 's'}
        if ck == 'mfma' and vd & cs: n = max(n, 2)
        if ck == 'dpp' and vd & cs: n = max(n, 2)
        if cur.op.startswith('v_permlane') and vd & cs: n = max(n, 2)
        if cur.op.startswith(('v_readfirstlane', 'v_readlane')) and vd & cs: n = max(n, 1)
        if sd:
            if ck in ('vmem', 'dma') and sd & cs: n = max(n, 5)
            if ck in valu_like + ('mfma',) and sd & cs: n = max(n, 2)
            if cur.op.startswith(('v_readlane', 'v_writelane')) and sd & cs: n = max(n, 4)
            if ck == 'salu' and sd & cs: n = max(n, 3)
            if (('s', 126) in sd or ('s', 127) in sd):
                if ck == 'mfma': n = max(n, 4)
                if ck == 'dpp': n = max(n, 5)
        base = prev.op.replace('_e32', '').replace('_e64', '')
        if base in TRANS and ck in valu_like + ('mfma',) and vd & cs and cur.op.replace('_e32', '').replace('_e64', '') not in TRANS: n = max(n, 1)
        if base in TRANS and ck in ('vmem', 'ds') and vd & cs: n = max(n, 1)
        if prev.op.startswith('v_dot2'):
            if (vd & (cs | cd)) and not (cur.op == prev.op and False):
                if cur.op == prev.op and len(cur.ops) == 4 and set(_regs(cur.ops[3])) == vd and not (vd & set(_regs(cur.ops[1]) + _regs(cur.ops[2]))): pass
                else: n = max(n, 3)
    if pk == 'mfma':
        D = pd
        far = 8 if prev.passes == 4 else 12
        if ck == 'mfma':
            a, b, c = [set(x) for x in cur.src]
            if D & (a | b): n = max(n, far)
            if D & c:
                if c == D and cur.passes == prev.passes: pass
                else: n = max(n, 6 if prev.passes == 4 else 10)
            elif D & cd:
                n = max(n, far)
        elif ck in valu_like + ('vmem', 'ds', 'dma'):
            if D & (cs | cd): n = max(n, far)
        if ck in valu_like:
            c = set(prev.src[2])
            if c & cd: n = max(n, 3 if prev.passes == 4 else 7)
    if pk == 'vmem' and ('store' in prev.op) and ('x4' in prev.op or 'x3' in prev.op):
        data = set(_regs(prev.ops[0])) if prev.op.startswith('buffer') else set(_regs(prev.ops[1]))
        if ck in valu_like + ('mfma',) and data & cd: n = max(n, 2)
        if ck in ('ds', 'vmem') and data & cd: n = max(n, 1)
    if pk == 'salu' and ('s', 124) in pd and ck == 'dma': n = max(n, 1)
    if pk == 'salu' and (('s', 126) in pd or ('s', 127) in pd):
        pass
    return n

class Asm:
    def __init__(self):
        self.lines = []
        self.lab = 0
    def __call__(self, text):
        for t in text.strip('\n').split('\n'):
            t = t.strip()
            if not t: continue
            self.lines.append(t)
    def label(self, name): self.lines.append(name + ':')
    def newlabel(self, p='L'):
        self.lab += 1
        return '%s_%d' % (p, self.lab)
    def comment(self, t): self.lines.append('; ' + t)
    def finalize(self, window=20):
        out = []
        hist = []
        label_pos = {}
        inss = []
        nops = 0
        pending = {}
        alts = []
        def required(h, ins):
            req = 0; dist = 0
            for p in reversed(h):
                r = need(p, ins)
                if r > dist: req = max(req, r - dist)
                dist += p.states()
                if dist >= window: break
            return req
        dead = False
        for t in self.lines:
            if t.startswith(';') or t.startswith('.'):
                out.append('    ' + t); continue
            if t.endswith(':'):
                name = t[:-1]
                out.append(t); label_pos[name] = len(inss)
                if dead:
                    hist = []; alts = []; dead = False
                for snap in pending.pop(name, []): alts.append(list(snap))
                continue
            ins = Ins(t)
            req = required(hist, ins)
            for a in alts: req = max(req, required(a, ins))
            def push(x):
                hist.append(x); inss.append(x)
                for a in alts: a.append(x)
            if req > 0:
                nops += req
                while req > 0:
                    k = min(req, 16)
                    push(Ins('s_nop %d' % (k - 1))); out.append('    s_nop %d' % (k - 1)); req -= k
            push(ins)
            if len(hist) > 64: hist = hist[-64:]
            na = []
            for a in alts:
                a.append
                na.append(a[-64:])
            alts = [a for a in na if getattr(a, '__len__')() > 0][-8:]
            out.append('    ' + t)
            if ins.op.startswith(('s_cbranch', 's_branch')):
                tgt = ins.ops[0]
                if tgt in label_pos:
                    head = inss[label_pos[tgt]:label_pos[tgt] + window]
                    tail = hist[-window:]
                    d0 = 0
                    for hi, h in enumerate(head):
                        dist = d0
                        for p in reversed(tail):
                            r = need(p, h)
                            if r > dist:
                                raise RuntimeError('loop-carried hazard: "%s" -> "%s" needs %d has %d (target %s)' % (p.text, h.text, r, dist, tgt))
                            dist += p.states()
                            if dist >= window: break
                        d0 += h.states()
                        if d0 >= window: break
                else:
                    pending.setdefault(tgt, []).append(hist[-window:])
                    for a in alts: pending[tgt].append(a[-window:])
                if ins.op == 's_branch': dead = True
            if ins.op == 's_endpgm': dead = True
        self.nops = nops
        return '\n'.join(out) + '\n'
```

```python
import sys, os
sys.path.insert(0, os.path.dirname(os.path.abspath(__file__)))
from asmlib import Asm

NAME = "sequential_preLN__sliding_block__dense_activation_gelu__prompt_kernel"

WS_FLAG  = 0x0000
WS_XFLAG = 0x1000
WS_RFLAG = 0x2000
WS_STAT1 = 0x10000
WS_STAT2 = 0x20000
WS_QKV   = 0x100000; QKV_STRIDE = 0x100000
WS_KVX   = 0x900000; KVX_STRIDE = 0xA0000
WS_O     = 0x1000000; O_STRIDE = 0x50000
WS_H     = 0x1400000; H_STRIDE = 0x50000
WS_G     = 0x1800000; G_STRIDE = 0xD8000
WS_WO    = 0x2000000
WS_W2    = 0x2100000
WS_STAMP = 0x3000000
WS_BYTES = 0x10000000

SRD_X, SRD_W, SRD_WS, SRD_OUT, SRD_DBG, SRD_B = 28, 32, 36, 40, 44, 48
sC, sR, sWave, sMode, sMt, sNt = 52, 53, 54, 55, 56, 57
sWm, sWn = 58, 59
def srd(b): return "s[%d:%d]" % (b, b + 3)
def vr(b, n=1): return "v%d" % b if n == 1 else "v[%d:%d]" % (b, b + n - 1)
def sr(b, n=1): return "s%d" % b if n == 1 else "s[%d:%d]" % (b, b + n - 1)

QSCALE = (20 ** -0.5) * 1.4426950408889634
import struct
def f2u(f): return struct.unpack('<I', struct.pack('<f', f))[0]

class Gen:
    def __init__(self, stop_after=99, stamps=False):
        self.a = Asm()
        self.stop_after = stop_after
        self.stamps = stamps

    def build_srd(self, dst, src_pair, nbytes):
        a = self.a
        a("s_mov_b32 s%d, s%d" % (dst, src_pair))
        a("s_mov_b32 s%d, s%d" % (dst + 1, src_pair + 1))
        a("s_mov_b32 s%d, 0x%x" % (dst + 2, nbytes))
        a("s_mov_b32 s%d, 0x00020000" % (dst + 3))

    def stamp(self, idx, vtmp=244):
        if not self.stamps: return
        a = self.a
        a("s_memrealtime s[96:97]")
        a("s_waitcnt lgkmcnt(0)")
        a("s_lshl_b32 s98, s2, 8")
        a("s_add_u32 s98, s98, 0x%x" % (WS_STAMP + idx * 4))
        a("v_mov_b32 v%d, s96" % vtmp)
        a("v_mov_b32 v%d, 0" % (vtmp + 1))
        a("s_mov_b64 s[96:97], exec")
        a("s_mov_b64 exec, 1")
        a("buffer_store_dword v%d, v%d, %s, s98 offen" % (vtmp, vtmp + 1, srd(SRD_WS)))
        a("s_mov_b64 exec, s[96:97]")

    def poll_ge(self, vaddr, soff, vtmp, val, nlanes_mask=None, srdn=SRD_WS, label='poll', x2=False):
        a = self.a
        L = a.newlabel(label); Ld = a.newlabel(label + 'd')
        a("s_mov_b32 s92, 0")
        a.label(L)
        a("buffer_load_dword v%d, v%d, %s, %s offen sc1" % (vtmp, vaddr, srd(srdn), soff))
        a("s_waitcnt vmcnt(0)")
        a("v_cmp_gt_u32 vcc, %d, v%d" % (val, vtmp))
        if nlanes_mask is not None:
            a("s_and_b64 vcc, vcc, %s" % nlanes_mask)
        a("s_cbranch_vccz %s" % Ld)
        a("s_add_u32 s92, s92, 1")
        a("s_cmp_lt_u32 s92, 0x40000")
        a("s_cbranch_scc1 %s" % L)
        a.label(Ld)

    def prologue(self):
        a = self.a
        a("s_cmp_ge_u32 s2, 256")
        a("s_cbranch_scc1 L_end")
        a("s_load_dwordx16 s[4:19], s[0:1], 0")
        a("s_load_dwordx4 s[20:23], s[0:1], 64")
        a("s_load_dwordx2 s[24:25], s[0:1], 80")
        a("v_lshrrev_b32 v1, 6, v0")
        a("v_and_b32 v2, 63, v0")
        a("v_readfirstlane_b32 s%d, v1" % sWave)
        a("s_and_b32 s%d, s2, 7" % sC)
        a("s_lshr_b32 s%d, s2, 3" % sR)
        a("s_mov_b32 s%d, 0" % sMode)
        a("s_waitcnt lgkmcnt(0)")
        self.build_srd(SRD_X, 4, 2048 * 1280)
        self.build_srd(SRD_W, 6, 640 * 3840)
        self.build_srd(SRD_WS, 24, WS_BYTES)
        self.build_srd(SRD_DBG, 22, 256)
        self.build_srd(SRD_OUT, 20, 2048 * 1280)

    ACC = 16
    XA, WA = 80, 96
    XB, WB = 112, 128
    vX0, vX1 = 144, 145
    vW = 146
    vCS = 150
    vOnes = 152
    def acc(self, j, mb): return self.ACC + (j * 4 + mb) * 4

    def gemm_loads(self, xs, ws_, xaddr, woff, xfrag_major):
        L = []
        for j in range(4):
            L.append("ds_read_b64_tr_b16 %s, v%d offset:%d" % (vr(ws_ + j * 4, 2), self.vW + j, woff))
            L.append("ds_read_b64_tr_b16 %s, v%d offset:%d" % (vr(ws_ + j * 4 + 2, 2), self.vW + j, woff + (1024 if not xfrag_major else 4096)))
        X = []
        for mb in range(4):
            if xfrag_major: X.append("ds_read_b128 %s, v%d offset:%d" % (vr(xs + mb * 4, 4), xaddr[0], xaddr[1] + mb * 1024))
            else: X.append("ds_read_b128 %s, v%d offset:%d" % (vr(xs + mb * 4, 4), xaddr, mb * 2048))
        out = []
        for i in range(4):
            out.append(X[i]); out += L[2 * i:2 * i + 2]
        return out

    def gemm_step(self, xs, ws_, loads, extra=()):
        a = self.a
        fill = list(loads)
        dots = []
        for j in range(2):
            for d in range(4):
                dots.append("v_dot2_f32_bf16 v%d, v%d, v%d, v%d" % (self.vCS + j, ws_ + j * 4 + d, self.vOnes, self.vCS + j))
        dots = [dots[i // 2 + (i % 2) * 4] for i in range(8)]
        fillers = fill + dots + list(extra)
        n = 0
        mf = [(j, mb) for mb in range(4) for j in range(4)]
        per = [[] for _ in range(16)]
        for i, f in enumerate(fillers):
            per[min(15, i * 16 // max(len(fillers), 16) if len(fillers) > 16 else i)].append(f)
        for i, (j, mb) in enumerate(mf):
            a("v_mfma_f32_16x16x32_bf16 %s, %s, %s, %s" % (vr(self.acc(j, mb), 4), vr(ws_ + j * 4, 4), vr(xs + mb * 4, 4), vr(self.acc(j, mb), 4)))
            for f in per[i]: a(f)

    def gemm_mainloop(self, nstages, nslots, slot_bytes, xfrag_major, tag):
        a = self.a
        if xfrag_major:
            x_s0 = (self.vX0, 0); x_s1 = (self.vX0, 8192)
        else:
            x_s0 = self.vX0; x_s1 = self.vX1
        wstep = 8192
        for z in range(64): pass
        for i in range(64): a("v_mov_b32 v%d, 0" % (self.ACC + i))
        a("v_mov_b32 v%d, 0" % self.vCS); a("v_mov_b32 v%d, 0" % (self.vCS + 1))
        a("v_mov_b32 v%d, 0x3f803f80" % self.vOnes)
        a("s_mov_b32 s60, 0"); a("s_mov_b32 s62, 0")
        a("s_barrier")
        for l in self.gemm_loads(self.XA, self.WA, x_s0, 0, xfrag_major): a(l)
        Lp = a.newlabel(tag + '_loop')
        a.label(Lp)
        a("s_waitcnt lgkmcnt(0)")
        self.gemm_step(self.XA, self.WA, self.gemm_loads(self.XB, self.WB, x_s1, wstep, xfrag_major))
        a("s_add_u32 s60, s60, 1")
        a("s_cmp_eq_u32 s60, %d" % nslots)
        a("s_mov_b32 s61, 0x%x" % slot_bytes)
        a("s_cselect_b32 s61, 0x%x, s61" % ((-(nslots - 1) * slot_bytes) & 0xffffffff))
        a("s_cselect_b32 s60, 0, s60")
        upd = [self.vX0] + ([] if xfrag_major else [self.vX1]) + [self.vW + j for j in range(4)]
        a("s_waitcnt lgkmcnt(0)")
        for r in upd: a("v_add_u32 v%d, s61, v%d" % (r, r))
        a("s_add_u32 s62, s62, 1")
        a("s_cmp_eq_u32 s62, %d" % nstages)
        Ll = a.newlabel(tag + '_last')
        a("s_cbranch_scc1 %s" % Ll)
        self.gemm_step(self.XB, self.WB, self.gemm_loads(self.XA, self.WA, x_s0, 0, xfrag_major))
        a("s_barrier")
        a("s_branch %s" % Lp)
        a.label(Ll)
        self.gemm_step(self.XB, self.WB, [])
        a("s_barrier")

    def p1_consumer(self):
        a = self.a
        a("v_lshrrev_b32 v3, 5, v2")
        a("v_and_b32 v4, 31, v2")
        a("s_lshl_b32 s60, s%d, 8" % sC)
        a("s_lshl_b32 s61, s%d, 3" % sR)
        a("s_add_u32 s60, s60, s61")
        a("s_lshl_b32 s61, s%d, 1" % sWave)
        a("s_add_u32 s60, s60, s61")
        a("v_add_u32 v1, s60, v3")
        a("s_mov_b32 s61, 1280")
        a("v_mul_lo_u32 v6, v1, s61")
        a("v_lshlrev_b32 v7, 4, v4")
        a("v_add_u32 v6, v6, v7")
        a("v_add_u32 v7, 1024, v6")
        a("v_cmp_gt_u32 vcc, 16, v4")
        a("v_mov_b32 v8, 0x7fffffff")
        a("v_cndmask_b32 v7, v8, v7, vcc")
        a("buffer_load_dwordx4 v[16:19], v6, %s, 0 offen" % srd(SRD_X))
        a("buffer_load_dwordx4 v[20:23], v6, %s, 0 offen offset:512" % srd(SRD_X))
        a("buffer_load_dwordx4 v[24:27], v7, %s, 0 offen" % srd(SRD_X))
        self.p1_consumer_addr()
        a("v_mov_b32 v9, 0x3f803f80")
        a("v_mov_b32 v10, 0"); a("v_mov_b32 v11, 0"); a("v_mov_b32 v12, 0"); a("v_mov_b32 v13, 0")
        a("s_waitcnt vmcnt(0)")
        for i in range(0, 12, 2):
            a("v_dot2_f32_bf16 v10, v%d, v9, v10" % (16 + i))
            a("v_dot2_f32_bf16 v11, v%d, v%d, v11" % (16 + i, 16 + i))
            a("v_dot2_f32_bf16 v12, v%d, v9, v12" % (17 + i))
            a("v_dot2_f32_bf16 v13, v%d, v%d, v13" % (17 + i, 17 + i))
        a("v_add_f32 v10, v10, v12")
        a("v_add_f32 v11, v11, v13")
        for rot in (8, 4, 2, 1):
            a("v_add_f32_dpp v10, v10, v10 row_ror:%d row_mask:0xf bank_mask:0xf" % rot)
            a("v_add_f32_dpp v11, v11, v11 row_ror:%d row_mask:0xf bank_mask:0xf" % rot)
        a("v_mov_b32 v12, v10"); a("v_mov_b32 v13, v11")
        a("v_permlane16_swap_b32 v10, v12")
        a("v_permlane16_swap_b32 v11, v13")
        a("v_add_f32 v10, v10, v12")
        a("v_add_f32 v11, v11, v13")
        self.finish_stats(10, 11, 12)
        a("v_lshlrev_b32 v5, 3, v1")
        a("s_mov_b64 s[62:63], exec")
        a("s_mov_b32 exec_lo, 1"); a("s_mov_b32 exec_hi, 1")
        a("s_mov_b32 s61, 0x%x" % WS_STAT1)
        a("buffer_store_dwordx2 v[10:11], v5, %s, s61 offen sc0 sc1" % srd(SRD_WS))
        a("s_mov_b64 exec, s[62:63]")
        a("s_waitcnt vmcnt(0)")

    def finish_stats(self, vs, vq, vt):
        a = self.a
        a("v_mul_f32 v%d, 0x%x, v%d" % (vs, f2u(1.0 / 640), vs))
        a("v_mul_f32 v%d, 0x%x, v%d" % (vq, f2u(1.0 / 640), vq))
        a("v_fma_f32 v%d, -v%d, v%d, v%d" % (vq, vs, vs, vq))
        a("v_max_f32 v%d, 0, v%d" % (vq, vq))
        a("v_add_f32 v%d, 0x%x, v%d" % (vq, f2u(1e-5), vq))
        a("v_rsq_f32 v%d, v%d" % (vq, vq))

    def common_wave_ids(self):
        a = self.a
        a("s_and_b32 s%d, s%d, 1" % (sWm, sWave))
        a("s_lshr_b32 s%d, s%d, 1" % (sWn, sWave))
        a("s_and_b32 s%d, s%d, 1" % (sWn, sWn))

    def w_addr(self, wbase, p4):
        a = self.a
        a("v_and_b32 v3, 15, v2")
        a("v_lshrrev_b32 v4, 4, v2")
        a("v_lshrrev_b32 v5, 2, v3")
        a("v_and_b32 v6, 3, v3")
        if not p4:
            a("v_lshlrev_b32 v7, 3, v4")
            a("v_add_u32 v7, v7, v5")
            a("v_and_b32 v8, 1, v4")
            a("v_lshlrev_b32 v8, 2, v8")
            a("v_or_b32 v8, v8, v5")
        else:
            a("v_lshlrev_b32 v7, 2, v4")
            a("v_add_u32 v7, v7, v5")
            a("v_and_b32 v8, 7, v7")
        a("v_lshlrev_b32 v7, 8, v7")
        a("v_lshlrev_b32 v6, 3, v6")
        a("v_add_u32 v7, v7, v6")
        a("v_add_u32 v7, 0x%x, v7" % wbase)
        a("s_lshl_b32 s60, s%d, 2" % sWn)
        a("s_lshl_b32 s61, s%d, 1" % sWm)
        for j in range(4):
            a("s_xor_b32 s62, s61, %d" % j)
            a("s_add_u32 s62, s62, s60")
            a("v_xor_b32 v6, s62, v8")
            a("v_lshlrev_b32 v6, 5, v6")
            a("v_add_u32 v%d, v6, v7" % (self.vW + j))

    def p1_consumer_addr(self):
        a = self.a
        a("v_and_b32 v14, 15, v2")
        a("v_lshrrev_b32 v15, 4, v2")
        a("v_lshrrev_b32 v3, 1, v14")
        a("v_xor_b32 v3, v3, v15")
        a("v_lshlrev_b32 v14, 7, v14")
        a("s_lshl_b32 s60, s%d, 13" % sWm)
        a("v_add_u32 v14, s60, v14")
        a("v_lshlrev_b32 v4, 4, v3")
        a("v_add_u32 v%d, v14, v4" % self.vX0)
        a("v_xor_b32 v3, 4, v3")
        a("v_lshlrev_b32 v4, 4, v3")
        a("v_add_u32 v%d, v14, v4" % self.vX1)
        self.w_addr(16384, False)

    def p1_producer_setup(self):
        a = self.a
        a("s_sub_u32 s63, s%d, 4" % sWave)
        a("v_lshrrev_b32 v3, 3, v2")
        a("v_and_b32 v4, 7, v2")
        a("v_lshrrev_b32 v5, 4, v2")
        a("s_lshl_b32 s60, s63, 2")
        a("v_add_u32 v5, s60, v5")
        a("v_xor_b32 v4, v4, v5")
        a("v_lshlrev_b32 v4, 4, v4")
        a("s_lshl_b32 s60, s63, 3")
        a("v_add_u32 v3, s60, v3")
        a("s_mov_b32 s61, 1280")
        a("v_mul_lo_u32 v3, v3, s61")
        a("v_add_u32 v16, v3, v4")
        a("v_lshrrev_b32 v3, 4, v2")
        a("s_lshl_b32 s60, s63, 2")
        a("v_or_b32 v4, s60, v3")
        a("v_lshlrev_b32 v4, 1, v4")
        a("v_and_b32 v5, 15, v2")
        a("v_xor_b32 v4, v4, v5")
        a("v_lshlrev_b32 v4, 4, v4")
        a("s_lshl_b32 s60, s63, 3")
        a("v_add_u32 v3, s60, v3")
        a("s_mov_b32 s61, 3840")
        a("v_mul_lo_u32 v3, v3, s61")
        a("v_add_u32 v17, v3, v4")
        a("s_lshl_b32 s64, s%d, 8" % sC)
        a("s_lshl_b32 s60, s%d, 7" % sMt)
        a("s_add_u32 s64, s64, s60")
        a("s_mul_i32 s64, s64, 1280")
        a("s_lshl_b32 s65, s%d, 8" % sNt)
        a("s_lshl_b32 s66, s63, 10")
        a("s_lshl_b32 s67, s63, 11")
        a("s_add_u32 s67, s67, 16384")
        a("s_mov_b32 s68, 0")

    def p1_issue_stage(self):
        a = self.a
        for q in range(8):
            a("s_add_u32 s60, s68, s66")
            if q: a("s_add_u32 s60, s60, %d" % (q * 2048))
            a("s_mov_b32 m0, s60")
            a("s_add_u32 s61, s64, %d" % (q * 16 * 1280))
            a("buffer_load_dwordx4 v16, %s, s61 offen lds" % srd(SRD_X))
            jj = (q & 1) + 4 * (q >> 1)
            a("s_add_u32 s60, s68, s67")
            if jj: a("s_add_u32 s60, s60, %d" % (jj * 1024))
            a("s_mov_b32 m0, s60")
            a("s_add_u32 s61, s65, %d" % (jj * 4 * 3840))
            a("buffer_load_dwordx4 v17, %s, s61 offen lds" % srd(SRD_W))
        a("s_add_u32 s64, s64, 128")
        a("s_add_u32 s65, s65, %d" % (64 * 3840))
        a("s_add_u32 s68, s68, 32768")
        a("s_cmp_eq_u32 s68, %d" % (5 * 32768))
        a("s_cselect_b32 s68, 0, s68")

    def producer_loop(self, issue, nstages, per_stage, tag):
        a = self.a
        for _ in range(4): issue()
        a("s_waitcnt vmcnt(%d)" % (2 * per_stage))
        a("s_barrier")
        a("s_mov_b32 s69, 0")
        Lp = a.newlabel(tag)
        a.label(Lp)
        issue()
        a("s_waitcnt vmcnt(%d)" % (2 * per_stage))
        a("s_barrier")
        a("s_add_u32 s69, s69, 1")
        a("s_cmp_lt_u32 s69, %d" % (nstages - 4))
        a("s_cbranch_scc1 %s" % Lp)
        a("s_waitcnt vmcnt(%d)" % per_stage)
        a("s_barrier")
        a("s_waitcnt vmcnt(0)")
        a("s_barrier")
        a("s_barrier")
        a("s_barrier")

    def flag_store(self, val, always_sc1=False):
        a = self.a
        a("s_lshl_b32 s60, s%d, 8" % sC)
        a("s_lshl_b32 s61, s%d, 2" % sR)
        a("s_add_u32 s60, s60, s61")
        if WS_FLAG: a("s_add_u32 s60, s60, 0x%x" % WS_FLAG)
        a("v_mov_b32 v3, %d" % val)
        a("v_mov_b32 v4, 0")
        a("s_mov_b64 s[62:63], exec")
        a("s_mov_b64 exec, 1")
        if always_sc1:
            a("buffer_store_dword v3, v4, %s, s60 offen sc0 sc1" % srd(SRD_WS))
        else:
            Lm = a.newlabel('fmix'); Ld = a.newlabel('fdone')
            a("s_cmp_lg_u32 s%d, 0" % sMode)
            a("s_cbranch_scc1 %s" % Lm)
            a("buffer_store_dword v3, v4, %s, s60 offen" % srd(SRD_WS))
            a("s_branch %s" % Ld)
            a.label(Lm)
            a("buffer_wbl2 sc1")
            a("s_waitcnt vmcnt(0)")
            a("buffer_store_dword v3, v4, %s, s60 offen sc0 sc1" % srd(SRD_WS))
            a.label(Ld)
        a("s_mov_b64 exec, s[62:63]")

    def flags_wait(self, val):
        a = self.a
        a("v_and_b32 v3, 31, v2")
        a("v_lshlrev_b32 v3, 2, v3")
        a("s_lshl_b32 s60, s%d, 8" % sC)
        if WS_FLAG: a("s_add_u32 s60, s60, 0x%x" % WS_FLAG)
        self.poll_ge(3, "s60", 4, val)
        Ld = a.newlabel('acq')
        a("s_cmp_eq_u32 s%d, 0" % sMode)
        a("s_cbranch_scc1 %s" % Ld)
        a("buffer_inv sc1")
        a("s_waitcnt vmcnt(0)")
        a.label(Ld)

    def arrival_publish(self):
        a = self.a
        a("v_mov_b32 v3, 0"); a("v_mov_b32 v4, 0")
        a("s_mov_b64 s[62:63], exec")
        a("s_lshl_b32 s60, s%d, 8" % sC)
        a("s_lshl_b32 s61, s%d, 2" % sR)
        a("s_add_u32 s60, s60, s61")
        a("s_mov_b64 exec, 1")
        a("buffer_store_dword v3, v4, %s, s60 offen sc0 sc1" % srd(SRD_WS))
        Lx = a.newlabel('nox'); Lr = a.newlabel('nor')
        a("s_cmp_lt_u32 s%d, 10" % sR); a("s_cbranch_scc1 %s" % Lx)
        a("s_cmp_ge_u32 s%d, 30" % sR); a("s_cbranch_scc1 %s" % Lx)
        a("s_lshl_b32 s60, s%d, 9" % sC)
        a("s_sub_u32 s61, s%d, 10" % sR)
        a("s_lshl_b32 s61, s61, 4")
        a("s_add_u32 s60, s60, s61")
        a("s_add_u32 s60, s60, 0x%x" % WS_XFLAG)
        a("s_mov_b64 exec, 15")
        a("v_lshlrev_b32 v5, 2, v2")
        a("buffer_store_dword v3, v5, %s, s60 offen sc0 sc1" % srd(SRD_WS))
        a.label(Lx)
        a("s_cmp_lt_u32 s%d, 30" % sR); a("s_cbranch_scc1 %s" % Lr)
        a("s_lshl_b32 s60, s%d, 1" % sC)
        a("s_add_u32 s60, s60, s%d" % sR)
        a("s_sub_u32 s60, s60, 30")
        a("s_lshl_b32 s60, s60, 2")
        a("s_add_u32 s60, s60, 0x%x" % WS_RFLAG)
        a("s_mov_b64 exec, 1")
        a("buffer_store_dword v3, v4, %s, s60 offen sc0 sc1" % srd(SRD_WS))
        a.label(Lr)
        a("s_mov_b64 exec, 1")
        a("s_waitcnt vmcnt(0)")
        a("s_getreg_b32 s60, hwreg(HW_REG_XCC_ID)")
        a("s_and_b32 s60, s60, 15")
        a("s_or_b32 s60, s60, 0x80")
        a("v_mov_b32 v3, s60")
        a("s_lshl_b32 s60, s%d, 5" % sC)
        a("s_add_u32 s60, s60, s%d" % sR)
        a("buffer_store_byte v3, v4, %s, s60 offen sc0 sc1" % srd(SRD_DBG))
        a("s_mov_b64 exec, s[62:63]")

    def arrival_wait(self):
        a = self.a
        L = a.newlabel('arr'); Ld = a.newlabel('arrd')
        a("v_lshlrev_b32 v3, 2, v2")
        a("s_mov_b32 s92, 0")
        a.label(L)
        a("buffer_load_dword v4, v3, %s, 0 offen sc1" % srd(SRD_DBG))
        a("s_waitcnt vmcnt(0)")
        a("v_and_b32 v5, 0x80808080, v4")
        a("v_cmp_ne_u32 vcc, 0x80808080, v5")
        a("s_cbranch_vccz %s" % Ld)
        a("s_add_u32 s92, s92, 1")
        a("s_cmp_lt_u32 s92, 0x40000")
        a("s_cbranch_scc1 %s" % L)
        a.label(Ld)
        a("s_getreg_b32 s60, hwreg(HW_REG_XCC_ID)")
        a("s_and_b32 s60, s60, 15")
        a("s_or_b32 s60, s60, 0x80")
        a("s_mul_i32 s60, s60, 0x01010101")
        a("v_cmp_ne_u32 vcc, s60, v4")
        a("s_mov_b64 s[60:61], 0xff")
        a("s_lshl_b32 s62, s%d, 3" % sC)
        a("s_lshl_b64 s[60:61], s[60:61], s62")
        a("s_and_b64 s[60:61], s[60:61], vcc")
        a("s_cmp_lg_u64 s[60:61], 0")
        a("s_cselect_b32 s%d, 1, 0" % sMode)

    MISC_STATS = 0
    MISC_CS = 1024
    def colsum_publish(self):
        a = self.a
        for j in range(2):
            r = self.vCS + j
            a("v_mov_b32 v3, v%d" % r)
            a("v_permlane32_swap_b32 v%d, v3" % r)
            a("v_add_f32 v%d, v%d, v3" % (r, r))
            a("v_mov_b32 v3, v%d" % r)
            a("v_permlane16_swap_b32 v%d, v3" % r)
            a("v_add_f32 v%d, v%d, v3" % (r, r))
        a("v_and_b32 v3, 15, v2")
        a("v_lshlrev_b32 v3, 2, v3")
        a("s_lshl_b32 s60, s%d, 2" % sWn)
        a("s_lshl_b32 s61, s%d, 1" % sWm)
        for j in range(2):
            a("s_xor_b32 s62, s61, %d" % j)
            a("s_add_u32 s62, s62, s60")
            a("s_lshl_b32 s62, s62, 6")
            a("v_add_u32 v4, s62, v3")
            a("ds_write_b32 v4, v%d offset:%d" % (self.vCS + j, self.MISC_CS))
        a("s_waitcnt lgkmcnt(0)")

    def ln_epilogue_load(self, vcs, vst):
        a = self.a
        a("v_lshrrev_b32 v3, 4, v2")
        a("v_lshlrev_b32 v3, 4, v3")
        a("s_lshl_b32 s60, s%d, 2" % sWn)
        a("s_lshl_b32 s61, s%d, 1" % sWm)
        for j in range(4):
            a("s_xor_b32 s62, s61, %d" % j)
            a("s_add_u32 s62, s62, s60")
            a("s_lshl_b32 s62, s62, 6")
            a("v_add_u32 v4, s62, v3")
            a("ds_read_b128 %s, v4 offset:%d" % (vr(vcs + 4 * j, 4), self.MISC_CS))
        a("v_and_b32 v3, 15, v2")
        a("v_lshlrev_b32 v3, 3, v3")
        a("s_lshl_b32 s60, s%d, 9" % sWm)
        a("v_add_u32 v3, s60, v3")
        for mb in range(4):
            a("ds_read_b64 %s, v3 offset:%d" % (vr(vst + 2 * mb, 2), self.MISC_STATS + mb * 128))
        a("s_waitcnt lgkmcnt(0)")

    def p1_epilogue(self):
        a = self.a
        vcs, vst = 80, 96
        self.colsum_publish()
        a("s_barrier")
        self.ln_epilogue_load(vcs, vst)
        a("s_cmp_lt_u32 s%d, 5" % sNt)
        a("s_cselect_b32 s60, 0x%x, 0x%x" % (f2u(QSCALE), f2u(1.0)))
        for mb in range(4): a("v_mul_f32 v%d, s60, v%d" % (vst + 2 * mb + 1, vst + 2 * mb + 1))
        for j in range(4):
            for mb in range(4):
                for e in range(4):
                    r = self.acc(j, mb) + e
                    a("v_fma_f32 v%d, -v%d, v%d, v%d" % (r, vst + 2 * mb, vcs + 4 * j + e, r))
                for e in range(4):
                    r = self.acc(j, mb) + e
                    a("v_mul_f32 v%d, v%d, v%d" % (r, vst + 2 * mb + 1, r))
        P = 112
        for j in range(4):
            for u in range(2):
                d = P + (j * 2 + u) * 4
                r0 = self.acc(j, 2 * u); r1 = self.acc(j, 2 * u + 1)
                a("v_cvt_pk_bf16_f32 v%d, v%d, v%d" % (d, r0, r0 + 1))
                a("v_cvt_pk_bf16_f32 v%d, v%d, v%d" % (d + 1, r0 + 2, r0 + 3))
                a("v_cvt_pk_bf16_f32 v%d, v%d, v%d" % (d + 2, r1, r1 + 1))
                a("v_cvt_pk_bf16_f32 v%d, v%d, v%d" % (d + 3, r1 + 2, r1 + 3))
        a("v_lshrrev_b32 v3, 4, v2"); a("v_lshlrev_b32 v3, 11, v3")
        a("v_and_b32 v4, 15, v2"); a("v_lshlrev_b32 v4, 4, v4")
        a("v_add_u32 v3, v3, v4")
        a("s_lshl_b32 s64, s%d, 16" % sNt)
        a("s_lshl_b32 s60, s%d, 10" % sMt)
        a("s_add_u32 s64, s64, s60")
        a("s_lshl_b32 s60, s%d, 9" % sWm)
        a("s_add_u32 s64, s64, s60")
        a("s_lshl_b32 s65, s%d, 2" % sWn)
        a("s_lshl_b32 s66, s%d, 1" % sWm)
        for j in range(4):
            a("s_xor_b32 s60, s66, %d" % j)
            a("s_add_u32 s60, s60, s65")
            a("s_lshl_b32 s60, s60, 13")
            a("s_add_u32 s%d, s60, s64" % (68 + j))
        a("s_mul_i32 s60, s%d, 0x%x" % (sC, QKV_STRIDE))
        a("s_add_u32 s60, s60, 0x%x" % WS_QKV)
        for j in range(4):
            a("s_add_u32 s61, s60, s%d" % (68 + j))
            for u in range(2):
                a("buffer_store_dwordx4 %s, v3, %s, s61 offen offset:%d" % (vr(P + (j * 2 + u) * 4, 4), srd(SRD_WS), u * 256))
        Lq = a.newlabel('p1q'); Ld = a.newlabel('p1d')
        a("s_cmp_lt_u32 s%d, 5" % sNt)
        a("s_cbranch_scc1 %s" % Lq)
        a("s_mul_i32 s60, s%d, 0x%x" % (sC, KVX_STRIDE))
        a("s_add_u32 s60, s60, 0x%x" % ((WS_KVX - 160 * 2048) & 0xffffffff))
        for j in range(4):
            a("s_add_u32 s61, s60, s%d" % (68 + j))
            for u in range(2):
                a("buffer_store_dwordx4 %s, v3, %s, s61 offen offset:%d sc0 sc1" % (vr(P + (j * 2 + u) * 4, 4), srd(SRD_WS), u * 256))
        a("s_waitcnt vmcnt(8)")
        a("s_barrier")
        a("s_waitcnt vmcnt(0)")
        a("s_lshl_b32 s60, s%d, 9" % sC)
        a("s_sub_u32 s61, s%d, 10" % sR)
        a("s_lshl_b32 s61, s61, 4")
        a("s_add_u32 s60, s60, s61")
        a("s_lshl_b32 s61, s%d, 2" % sWave)
        a("s_add_u32 s60, s60, s61")
        a("s_add_u32 s60, s60, 0x%x" % WS_XFLAG)
        a("v_mov_b32 v3, 1"); a("v_mov_b32 v4, 0")
        a("s_mov_b64 s[62:63], exec"); a("s_mov_b64 exec, 1")
        a("buffer_store_dword v3, v4, %s, s60 offen sc0 sc1" % srd(SRD_WS))
        a("s_mov_b64 exec, s[62:63]")
        a("s_branch %s" % Ld)
        a.label(Lq)
        a("s_waitcnt vmcnt(0)")
        a("s_barrier")
        a.label(Ld)

    def p1_service(self):
        a = self.a
        self.arrival_publish()
        a("s_barrier")
        self.flag_store(1, always_sc1=True)
        a("s_barrier")
        a("s_barrier")
        self.arrival_wait()
        a("s_barrier")
        self.flags_wait(1)
        a("s_barrier")
        a("s_barrier")
        a("s_barrier")
        a("s_lshl_b32 s60, s%d, 8" % sC)
        a("s_lshl_b32 s61, s%d, 7" % sMt)
        a("s_add_u32 s60, s60, s61")
        a("s_lshl_b32 s60, s60, 3")
        a("s_add_u32 s60, s60, 0x%x" % WS_STAT1)
        a("v_lshlrev_b32 v3, 4, v2")
        a("buffer_load_dwordx4 v[4:7], v3, %s, s60 offen sc1" % srd(SRD_WS))
        a("s_waitcnt vmcnt(0)")
        a("ds_write_b128 v3, v[4:7] offset:%d" % self.MISC_STATS)
        a("s_waitcnt lgkmcnt(0)")
        for _ in range(4): a("s_barrier")
        a("s_barrier")
        a("s_barrier")
        self.flag_store(2)

    def relayout(self):
        a = self.a
        a("s_lshl_b32 s64, s%d, 1" % sC)
        a("s_add_u32 s64, s64, s%d" % sR)
        a("s_sub_u32 s64, s64, 30")
        a("s_lshl_b32 s64, s64, 3")
        a("s_add_u32 s64, s64, s%d" % sWave)
        a("s_lshl_b32 s65, s%d, 12" % sWave)
        a("v_lshrrev_b32 v3, 3, v2")
        a("v_and_b32 v4, 7, v2")
        a("v_lshlrev_b32 v4, 4, v4")
        a("v_lshrrev_b32 v5, 4, v2")
        a("v_and_b32 v6, 15, v2")
        a("v_lshrrev_b32 v7, 2, v6")
        a("v_and_b32 v6, 3, v6")
        a("v_lshlrev_b32 v5, 2, v5")
        a("v_add_u32 v5, v5, v7")
        a("v_lshlrev_b32 v5, 7, v5")
        a("v_lshlrev_b32 v6, 3, v6")
        a("v_add_u32 v5, v5, v6")
        a("v_add_u32 v5, s65, v5")
        a("v_lshlrev_b32 v8, 4, v2")
        Lp = a.newlabel('rl'); Lw2 = a.newlabel('rlw2'); Lgo = a.newlabel('rlgo'); Lend = a.newlabel('rlend')
        a("s_mov_b32 s79, 0")
        a.label(Lp)
        a("s_cmp_ge_u32 s64, 740"); a("s_cbranch_scc1 %s" % Lend)
        a("s_cmp_ge_u32 s64, 200"); a("s_cbranch_scc1 %s" % Lw2)
        a("s_mul_hi_u32 s66, s64, 0x%x" % ((1 << 32) // 10 + 1))
        a("s_mul_i32 s60, s66, 10")
        a("s_sub_u32 s67, s64, s60")
        self.build_srd(SRD_W, 8, 640 * 1280)
        a("s_mul_i32 s70, s66, 5120")
        a("s_add_u32 s70, s70, 0x%x" % WS_WO)
        a("s_mov_b32 s71, %d" % (20 * 5 * 1024))
        Lt = a.newlabel('rlt'); Lj = a.newlabel('rlj')
        a("v_lshrrev_b32 v9, 2, v3")
        a("v_and_b32 v10, 3, v3")
        a("s_cmp_ge_u32 s66, 16"); a("s_cbranch_scc1 %s" % Lt)
        for d in range(4):
            a("s_lshl_b32 s60, s66, 1")
            a("s_add_u32 s60, s60, %d" % (d & 1))
            a("s_mul_i32 s60, s60, 20")
            a("s_add_u32 s60, s60, %d" % (8 * (d >> 1)))
            a("v_lshlrev_b32 v11, 2, v9")
            a("v_add_u32 v11, v11, v10")
            a("v_add_u32 v%d, s60, v11" % (12 + d))
        a("s_branch %s" % Lj)
        a.label(Lt)
        for d in range(4):
            a("s_sub_u32 s60, s66, 16")
            a("s_lshl_b32 s60, s60, 2")
            a("s_add_u32 s60, s60, %d" % (2 * (d & 1)))
            a("s_mul_i32 s60, s60, 40")
            a("s_add_u32 s60, s60, %d" % (16 + 20 * (d >> 1)))
            a("v_mul_u32_u24 v11, 40, v9")
            a("v_add_u32 v11, v11, v10")
            a("v_add_u32 v%d, s60, v11" % (12 + d))
        a.label(Lj)
        a("s_branch %s" % Lgo)
        a.label(Lw2)
        a("s_sub_u32 s61, s64, 200")
        a("s_mul_hi_u32 s66, s61, 0x%x" % ((1 << 32) // 10 + 1))
        a("s_mul_i32 s60, s66, 10")
        a("s_sub_u32 s67, s61, s60")
        self.build_srd(SRD_W, 16, 1728 * 1280)
        a("s_mul_i32 s70, s66, 5120")
        a("s_add_u32 s70, s70, 0x%x" % WS_W2)
        a("s_mov_b32 s71, %d" % (54 * 5 * 1024))
        for d in range(4):
            a("s_lshl_b32 s60, s66, 5")
            a("s_add_u32 s60, s60, %d" % (8 * d))
            a("v_add_u32 v%d, s60, v3" % (12 + d))
        a.label(Lgo)
        a("s_lshl_b32 s60, s67, 7")
        a("v_add_u32 v11, s60, v4")
        a("s_mov_b32 s61, 1280")
        for d in range(4):
            a("v_mul_lo_u32 v%d, v%d, s61" % (12 + d, 12 + d))
            a("v_add_u32 v%d, v%d, v11" % (12 + d, 12 + d))
        for d in range(4):
            a("s_add_u32 s60, s65, %d" % (d * 1024))
            a("s_mov_b32 m0, s60")
            a("buffer_load_dwordx4 v%d, %s, 0 offen lds" % (12 + d, srd(SRD_W)))
        a("s_waitcnt vmcnt(0)")
        for b in range(4):
            a("ds_read_b64_tr_b16 %s, v5 offset:%d" % (vr(16 + 4 * b, 2), b * 32))
            a("ds_read_b64_tr_b16 %s, v5 offset:%d" % (vr(18 + 4 * b, 2), b * 32 + 2048))
        a("s_waitcnt lgkmcnt(0)")
        for b in range(4):
            a("s_lshl_b32 s60, s67, 2")
            a("s_add_u32 s60, s60, %d" % b)
            a("s_mul_i32 s61, s60, 52429")
            a("s_lshr_b32 s61, s61, 18")
            a("s_mul_i32 s62, s61, 5")
            a("s_sub_u32 s62, s60, s62")
            a("s_and_b32 s63, s61, 1")
            a("s_add_u32 s62, s62, 5")
            a("s_sub_u32 s62, s62, s63")
            a("s_cmp_ge_u32 s62, 5")
            a("s_cselect_b32 s63, 5, 0")
            a("s_sub_u32 s62, s62, s63")
            a("s_mul_i32 s61, s61, s71")
            a("s_lshl_b32 s62, s62, 10")
            a("s_add_u32 s61, s61, s62")
            a("s_add_u32 s61, s61, s70")
            a("buffer_store_dwordx4 %s, v8, %s, s61 offen sc0 sc1" % (vr(16 + 4 * b, 4), srd(SRD_WS)))
        a("s_add_u32 s64, s64, 128")
        a("s_branch %s" % Lp)
        a.label(Lend)
        a("s_waitcnt vmcnt(0)")
        a("s_barrier")

    def rflag_store(self, val):
        a = self.a
        a("s_lshl_b32 s60, s%d, 1" % sC)
        a("s_add_u32 s60, s60, s%d" % sR)
        a("s_sub_u32 s60, s60, 30")
        a("s_lshl_b32 s60, s60, 2")
        a("s_add_u32 s60, s60, 0x%x" % WS_RFLAG)
        a("v_mov_b32 v3, %d" % val); a("v_mov_b32 v4, 0")
        a("s_mov_b64 s[62:63], exec"); a("s_mov_b64 exec, 1")
        a("buffer_store_dword v3, v4, %s, s60 offen sc0 sc1" % srd(SRD_WS))
        a("s_mov_b64 exec, s[62:63]")

    KVB = 102400
    PL = 4128
    VB = KVB + 5 * PL
    NEG = f2u(-1e30)
    def p2_issue_kv(self, halo):
        a = self.a
        a("v_lshlrev_b32 v3, 4, v2")
        if not halo:
            a("s_mul_i32 s64, s%d, 0x%x" % (sC, QKV_STRIDE))
            a("s_add_u32 s64, s64, 0x%x" % (WS_QKV + 160 * 2048))
        else:
            a("s_sub_u32 s64, s%d, 1" % sC)
            a("s_mul_i32 s64, s64, 0x%x" % KVX_STRIDE)
            a("s_add_u32 s64, s64, 0x%x" % WS_KVX)
        a("s_mul_i32 s60, s%d, %d" % (sR, 5 * 2048))
        a("s_add_u32 s64, s64, s60")
        for it in range(3):
            Ls = a.newlabel('kvs')
            a("s_add_u32 s65, s%d, %d" % (sWave, 8 * it))
            if it == 2:
                a("s_cmp_ge_u32 s65, 20"); a("s_cbranch_scc1 %s" % Ls)
            a("s_cmp_ge_u32 s65, 10")
            a("s_cselect_b32 s66, 1, 0")
            a("s_mul_i32 s60, s66, 10")
            a("s_sub_u32 s67, s65, s60")
            a("s_lshr_b32 s68, s67, 1")
            a("s_and_b32 s67, s67, 1")
            a("s_mul_i32 s60, s66, %d" % (160 * 2048))
            a("s_lshl_b32 s61, s68, 11")
            a("s_add_u32 s60, s60, s61")
            a("s_lshl_b32 s61, s67, 10")
            a("s_add_u32 s60, s60, s61")
            a("s_add_u32 s60, s60, s64")
            a("s_mul_i32 s62, s66, %d" % (5 * self.PL))
            a("s_mul_i32 s63, s68, %d" % self.PL)
            a("s_add_u32 s62, s62, s63")
            a("s_add_u32 s62, s62, s61")
            a("s_add_u32 s62, s62, %d" % (self.KVB + (0 if halo else 2048)))
            a("s_mov_b32 m0, s62")
            a("buffer_load_dwordx4 v3, %s, s60 offen sc1 lds" % srd(SRD_WS))
            a.label(Ls)

    S_, T_, P_, KF, VF, O_, Q_, CF, CL, CN = 16, 32, 48, 56, 64, 72, 88, 96, 112, 128
    vKa, vKb, vVa = 144, 145, 146
    vRowD = 147
    def att_kloads(self, off):
        return ["ds_read_b64 %s, v%d offset:%d" % (vr(self.KF, 2), self.vKa, off),
                "ds_read_b64 %s, v%d offset:%d" % (vr(self.KF + 2, 2), self.vKa, off + self.PL),
                "ds_read_b64 %s, v%d offset:%d" % (vr(self.KF + 4, 2), self.vKb, off)]
    def att_vloads(self, off):
        return ["ds_read_b64_tr_b16 %s, v%d offset:%d" % (vr(self.VF, 2), self.vVa, off),
                "ds_read_b64_tr_b16 %s, v%d offset:%d" % (vr(self.VF + 2, 2), self.vVa, off + 64),
                "ds_read_b64_tr_b16 %s, v%d offset:%d" % (vr(self.VF + 4, 2), self.vVa, off + 128),
                "ds_read_b64_tr_b16 %s, v%d offset:%d" % (vr(self.VF + 6, 2), self.vVa, off + 192)]
    def att_S(self, C):
        a = self.a
        a("v_mfma_f32_32x32x16_bf16 %s, %s, %s, %s" % (vr(self.S_, 16), vr(self.KF, 4), vr(self.Q_, 4), vr(C, 16)))
        a("v_mfma_f32_32x32x16_bf16 %s, %s, %s, %s" % (vr(self.S_, 16), vr(self.KF + 4, 4), vr(self.Q_ + 4, 4), vr(self.S_, 16)))
    def att_adv(self):
        a = self.a
        for r in (self.vKa, self.vKb, self.vVa): a("v_add_u32 v%d, 256, v%d" % (r, r))
    def att_body(self, nextC):
        a = self.a
        for i in range(16): a("v_exp_f32 v%d, v%d" % (self.T_ + i, self.S_ + i))
        if nextC is not None:
            a("s_waitcnt lgkmcnt(4)")
            self.att_S(nextC)
        for i in range(8): a("v_cvt_pk_bf16_f32 v%d, v%d, v%d" % (self.P_ + i, self.T_ + 2 * i, self.T_ + 2 * i + 1))
        if nextC is not None:
            for l in self.att_kloads(512): a(l)
            a("s_waitcnt lgkmcnt(3)")
        else:
            a("s_waitcnt lgkmcnt(0)")
        a("v_mfma_f32_32x32x16_bf16 %s, %s, %s, %s" % (vr(self.O_, 16), vr(self.VF, 4), vr(self.P_, 4), vr(self.O_, 16)))
        a("v_mfma_f32_32x32x16_bf16 %s, %s, %s, %s" % (vr(self.O_, 16), vr(self.VF + 4, 4), vr(self.P_ + 4, 4), vr(self.O_, 16)))
        if nextC is not None:
            for l in self.att_vloads(256): a(l)
            self.att_adv()

    def p2_setup(self):
        a = self.a
        a("v_and_b32 v3, 31, v2")
        a("v_lshrrev_b32 v4, 5, v2")
        a("s_mul_i32 s64, s%d, 0x%x" % (sC, QKV_STRIDE))
        a("s_add_u32 s64, s64, 0x%x" % WS_QKV)
        a("s_mul_i32 s60, s%d, %d" % (sR, 5 * 2048))
        a("s_add_u32 s64, s64, s60")
        a("s_lshl_b32 s60, s%d, 8" % sWave)
        a("s_add_u32 s64, s64, s60")
        a("v_lshlrev_b32 v5, 3, v3")
        a("v_lshlrev_b32 v6, 12, v4")
        a("v_add_u32 v6, v6, v5")
        a("buffer_load_dwordx2 %s, v6, %s, s64 offen sc1" % (vr(self.Q_, 2), srd(SRD_WS)))
        a("buffer_load_dwordx2 %s, v6, %s, s64 offen offset:2048 sc1" % (vr(self.Q_ + 2, 2), srd(SRD_WS)))
        a("s_add_u32 s60, s64, %d" % (4 * 2048))
        a("buffer_load_dwordx2 %s, v5, %s, s60 offen sc1" % (vr(self.Q_ + 4, 2), srd(SRD_WS)))
    def p2_setup2(self):
        a = self.a
        a("v_and_b32 v3, 31, v2")
        a("v_lshrrev_b32 v4, 5, v2")
        a("s_cmp_eq_u32 s%d, 0" % sC)
        a("s_cselect_b32 s70, 8, s%d" % sWave)
        a("s_lshl_b32 s60, s70, 8")
        a("v_mul_u32_u24 v5, %d, v4" % (2 * self.PL))
        a("v_lshlrev_b32 v6, 3, v3")
        a("v_add_u32 v5, v5, v6")
        a("v_add_u32 v5, s60, v5")
        a("v_add_u32 v%d, %d, v5" % (self.vKa, self.KVB))
        a("v_add_u32 v6, s60, v6")
        a("v_add_u32 v%d, %d, v6" % (self.vKb, self.KVB + 4 * self.PL))
        a("v_and_b32 v5, 15, v2")
        a("v_lshrrev_b32 v6, 2, v5")
        a("v_and_b32 v5, 3, v5")
        a("v_lshrrev_b32 v7, 4, v2")
        a("v_and_b32 v7, 1, v7")
        a("v_min_u32 v8, 1, v5")
        a("v_add_u32 v8, 4, v8")
        a("v_cmp_eq_u32 vcc, 1, v7")
        a("v_cndmask_b32 v5, v5, v8, vcc")
        a("v_mul_u32_u24 v5, %d, v5" % self.PL)
        a("v_lshlrev_b32 v7, 2, v4")
        a("v_add_u32 v6, v6, v7")
        a("v_lshlrev_b32 v6, 3, v6")
        a("v_add_u32 v5, v5, v6")
        a("v_add_u32 v5, s60, v5")
        a("v_add_u32 v%d, %d, v5" % (self.vVa, self.VB))
        a("v_and_b32 v5, 1, v3"); a("v_lshlrev_b32 v5, 4, v5")
        a("v_lshrrev_b32 v6, 1, v3"); a("v_add_u32 v5, v5, v6")
        a("v_lshlrev_b32 v6, 1, v4")
        a("v_sub_u32 v%d, v5, v6" % self.vRowD)
        a("v_mov_b32 v5, 0x%x" % self.NEG)
        for r in range(16):
            Kr = 16 * (r & 1) + ((r & 3) >> 1) + 4 * (r >> 2)
            a("v_cmp_le_i32 vcc, %d, v%d" % (Kr, self.vRowD))
            a("v_cndmask_b32_e64 v%d, v5, 0, vcc" % (self.CL + r))
            a("v_cndmask_b32_e64 v%d, 0, v5, vcc" % (self.CF + r))
            a("v_mov_b32 v%d, 0" % (self.CN + r))
        a("v_mov_b32 v%d, 0" % (self.KF + 6)); a("v_mov_b32 v%d, 0" % (self.KF + 7))
        a("v_mov_b32 v%d, 0" % (self.Q_ + 6)); a("v_mov_b32 v%d, 0" % (self.Q_ + 7))

    def p2_ones_plane(self):
        a = self.a
        a("v_lshlrev_b32 v3, 3, v0")
        a("v_mov_b32 v4, 0x00003f80"); a("v_mov_b32 v5, 0")
        a("v_add_u32 v3, %d, v3" % (self.VB + 5 * self.PL))
        a("ds_write_b64 v3, v[4:5]")

    def p2_main(self):
        a = self.a
        a("v_cmp_gt_u32 vcc, 32, v2")
        a("v_cndmask_b32 v%d, 0, v%d, vcc" % (self.Q_ + 4, self.Q_ + 4))
        a("v_cndmask_b32 v%d, 0, v%d, vcc" % (self.Q_ + 5, self.Q_ + 5))
        a("v_mov_b32 v148, v%d" % self.vKa); a("v_mov_b32 v149, v%d" % self.vKb); a("v_mov_b32 v150, v%d" % self.vVa)
        a("s_mov_b32 s72, 0")
        Lredo = a.newlabel('att_redo'); Lfin = a.newlabel('att_fin')
        a.label(Lredo)
        for i in range(16): a("v_mov_b32 v%d, 0" % (self.O_ + i))
        a("s_add_u32 s71, s%d, 1" % sWave)
        a("s_cmp_eq_u32 s%d, 0" % sC)
        a("s_cselect_b32 s71, s71, 9")
        for l in self.att_kloads(0): a(l)
        L1 = a.newlabel('c1'); L2 = a.newlabel('c2'); L3 = a.newlabel('c3')
        a("s_cmp_lg_u32 s%d, 0" % sC); a("s_cbranch_scc1 %s" % L1)
        a("s_cmp_eq_u32 s71, 1"); a("s_cbranch_scc1 %s" % L2)
        for i in range(16): a("v_mov_b32 v%d, v%d" % (self.S_ + i, self.CN + i))
        a("s_branch %s" % L3)
        a.label(L1)
        for i in range(16): a("v_mov_b32 v%d, v%d" % (self.S_ + i, self.CF + i))
        a("s_branch %s" % L3)
        a.label(L2)
        for i in range(16): a("v_mov_b32 v%d, v%d" % (self.S_ + i, self.CL + i))
        a.label(L3)
        a("s_waitcnt lgkmcnt(0)")
        self.att_S(self.S_)
        for l in self.att_kloads(256): a(l)
        for l in self.att_vloads(0): a(l)
        a("s_nop 7"); a("s_nop 3")
        Lloop = a.newlabel('att_loop'); Lnl = a.newlabel('att_nl'); Llast = a.newlabel('att_last')
        a("s_cmp_lt_u32 s71, 2"); a("s_cbranch_scc1 %s" % Llast)
        a("s_sub_u32 s73, s71, 2")
        a("s_cmp_eq_u32 s73, 0"); a("s_cbranch_scc1 %s" % Lnl)
        a.label(Lloop)
        self.att_body(self.CN)
        a("s_sub_u32 s73, s73, 1")
        a("s_cmp_lg_u32 s73, 0")
        a("s_cbranch_scc1 %s" % Lloop)
        a.label(Lnl)
        self.att_body(self.CL)
        a.label(Llast)
        self.att_body(None)
        a("s_nop 7"); a("s_nop 3")
        a("v_mov_b32 v3, v%d" % (self.O_ + 8)); a("v_mov_b32 v4, v%d" % (self.O_ + 8))
        a("v_permlane32_swap_b32 v3, v4")
        a("s_cmp_lg_u32 s72, 0"); a("s_cbranch_scc1 %s" % Lfin)
        a("v_cmp_nle_f32 vcc, 0x%x, v4" % f2u(2.0 ** -60))
        a("s_mov_b64 s[60:61], vcc")
        a("v_cmp_nge_f32 vcc, 0x%x, v4" % f2u(2.0 ** 60))
        a("s_or_b64 vcc, vcc, s[60:61]")
        a("s_cbranch_vccz %s" % Lfin)
        a("s_mov_b32 s72, 1")
        a("v_mov_b32 v%d, v148" % self.vKa); a("v_mov_b32 v%d, v149" % self.vKb); a("v_mov_b32 v%d, v150" % self.vVa)
        a("v_mov_b32 v5, 0x%x" % f2u(-3e38))
        a("s_mov_b32 s73, 0")
        Lm = a.newlabel('mx'); M1 = a.newlabel('m1'); M2 = a.newlabel('m2'); M3 = a.newlabel('m3')
        a.label(Lm)
        for l in self.att_kloads(0): a(l)
        a("s_add_u32 s60, s73, 1")
        a("s_cmp_eq_u32 s60, s71"); a("s_cbranch_scc1 %s" % M2)
        a("s_cmp_lg_u32 s73, 0"); a("s_cbranch_scc1 %s" % M1)
        a("s_cmp_eq_u32 s%d, 0" % sC); a("s_cbranch_scc1 %s" % M1)
        for i in range(16): a("v_mov_b32 v%d, v%d" % (self.S_ + i, self.CF + i))
        a("s_branch %s" % M3)
        a.label(M1)
        for i in range(16): a("v_mov_b32 v%d, v%d" % (self.S_ + i, self.CN + i))
        a("s_branch %s" % M3)
        a.label(M2)
        for i in range(16): a("v_mov_b32 v%d, v%d" % (self.S_ + i, self.CL + i))
        a.label(M3)
        a("s_waitcnt lgkmcnt(0)")
        self.att_S(self.S_)
        a("s_nop 7"); a("s_nop 3")
        for i in range(16): a("v_max_f32 v5, v5, v%d" % (self.S_ + i))
        a("v_add_u32 v%d, 256, v%d" % (self.vKa, self.vKa)); a("v_add_u32 v%d, 256, v%d" % (self.vKb, self.vKb))
        a("s_add_u32 s73, s73, 1")
        a("s_cmp_lt_u32 s73, s71"); a("s_cbranch_scc1 %s" % Lm)
        a("v_mov_b32 v6, v5")
        a("v_permlane32_swap_b32 v5, v6")
        a("v_max_f32 v5, v5, v6")
        for i in range(16):
            a("v_sub_f32 v%d, v%d, v5" % (self.CN + i, self.CN + i))
            a("v_sub_f32 v%d, v%d, v5" % (self.CF + i, self.CF + i))
            a("v_sub_f32 v%d, v%d, v5" % (self.CL + i, self.CL + i))
        a("v_mov_b32 v%d, v148" % self.vKa); a("v_mov_b32 v%d, v149" % self.vKb)
        a("s_branch %s" % Lredo)
        a.label(Lfin)
        a("v_rcp_f32 v4, v4")
        for i in range(12): a("v_mul_f32 v%d, v%d, v4" % (self.O_ + i, self.O_ + i))
        for i in range(6): a("v_cvt_pk_bf16_f32 v%d, v%d, v%d" % (self.P_ + i, self.O_ + 2 * i, self.O_ + 2 * i + 1))
        a("v_and_b32 v3, 31, v2"); a("v_lshrrev_b32 v4, 5, v2")
        a("v_and_b32 v5, 1, v3"); a("v_mul_u32_u24 v5, 20480, v5")
        a("v_lshrrev_b32 v6, 1, v3"); a("v_lshlrev_b32 v6, 4, v6")
        a("v_add_u32 v5, v5, v6")
        a("v_lshlrev_b32 v4, 8, v4")
        a("v_add_u32 v6, v5, v4")
        a("s_mul_i32 s64, s%d, 0x%x" % (sC, O_STRIDE))
        a("s_add_u32 s64, s64, 0x%x" % WS_O)
        a("s_mul_i32 s60, s%d, 40960" % sWave)
        a("s_add_u32 s64, s64, s60")
        a("s_lshr_b32 s65, s%d, 1" % sR)
        a("s_and_b32 s66, s%d, 1" % sR)
        a("s_lshl_b32 s60, s65, 10"); a("s_lshl_b32 s61, s66, 9")
        a("s_add_u32 s60, s60, s61"); a("s_add_u32 s60, s60, s64")
        a("buffer_store_dwordx4 %s, v6, %s, s60 offen" % (vr(self.P_, 4), srd(SRD_WS)))
        a("s_lshr_b32 s60, s65, 2"); a("s_add_u32 s60, s60, 16"); a("s_lshl_b32 s60, s60, 10")
        a("s_and_b32 s61, s65, 3"); a("s_lshl_b32 s61, s61, 8"); a("s_add_u32 s60, s60, s61")
        a("s_lshl_b32 s61, s66, 3"); a("s_add_u32 s60, s60, s61"); a("s_add_u32 s60, s60, s64")
        a("s_mov_b64 s[62:63], exec"); a("s_mov_b32 exec_hi, 0")
        a("buffer_store_dwordx2 %s, v5, %s, s60 offen" % (vr(self.P_ + 4, 2), srd(SRD_WS)))
        a("s_mov_b64 exec, s[62:63]")
        a("s_waitcnt vmcnt(0)")

    def tile80_ids(self):
        a = self.a
        a("s_and_b32 s%d, s%d, 3" % (sMt, sR))
        a("s_lshr_b32 s%d, s%d, 2" % (sNt, sR))
        a("s_and_b32 s74, s%d, 1" % sNt)
        a("s_lshl_b32 s75, s%d, 2" % sMt)
        a("s_lshl_b32 s60, s%d, 1" % sWm)
        a("s_add_u32 s75, s75, s60")
        a("s_add_u32 s76, s75, 1")
        a("s_sub_u32 s76, s76, s%d" % sWn)
        a("s_add_u32 s75, s75, s%d" % sWn)
    def colblk(self, dst, s):
        a = self.a
        a("s_add_u32 s%d, s74, %d" % (dst, s))
        if s == 4:
            a("s_cmp_eq_u32 s%d, 5" % dst)
            a("s_cselect_b32 s%d, 0, s%d" % (dst, dst))
        a("s_mul_i32 s61, s%d, 5" % sNt)
        a("s_add_u32 s%d, s%d, s61" % (dst, dst))
    ACC3 = 16
    def acc3(self, s, j): return self.ACC3 + (s * 2 + j) * 4
    EX = 102400
    def exchange80(self, exbase):
        a = self.a
        a("v_lshlrev_b32 v3, 4, v2")
        a("s_mul_i32 s60, s%d, 5120" % sWave)
        a("s_add_u32 s60, s60, %d" % exbase)
        a("v_add_u32 v4, s60, v3")
        for s in range(5): a("ds_write_b128 v4, %s offset:%d" % (vr(self.acc3(s, 1), 4), s * 1024))
        a("s_waitcnt lgkmcnt(0)")
        a("s_barrier")
        a("s_xor_b32 s60, s%d, 2" % sWave)
        a("s_mul_i32 s60, s60, 5120")
        a("s_add_u32 s60, s60, %d" % exbase)
        a("v_add_u32 v4, s60, v3")
        for s in range(5): a("ds_read_b128 %s, v4 offset:%d" % (vr(self.acc3(s, 1), 4), s * 1024))
        a("s_waitcnt lgkmcnt(0)")
        for s in range(5):
            for e in range(4): a("v_add_f32 v%d, v%d, v%d" % (self.acc3(s, 0) + e, self.acc3(s, 0) + e, self.acc3(s, 1) + e))

    HP = 246
    def p3_consumer(self):
        a = self.a
        XF, WF0, WF1, XR = 80, 160, 180, 200
        self.tile80_ids()
        a("v_and_b32 v3, 15, v2"); a("v_mul_u32_u24 v3, 1280, v3")
        a("v_lshrrev_b32 v4, 4, v2"); a("v_lshlrev_b32 v4, 3, v4")
        a("v_add_u32 v5, v3, v4")
        a("s_lshl_b32 s64, s%d, 8" % sC)
        a("s_lshl_b32 s60, s75, 4")
        a("s_add_u32 s64, s64, s60")
        a("s_mov_b32 s77, s64")
        a("s_mul_i32 s64, s64, 1280")
        for s in range(5):
            self.colblk(65, s)
            a("s_lshl_b32 s65, s65, 5")
            a("s_add_u32 s65, s65, s64")
            a("buffer_load_dwordx2 %s, v5, %s, s65 offen" % (vr(XR + 2 * s, 2), srd(SRD_X)))
        a("v_lshlrev_b32 v6, 4, v2")
        a("s_mul_i32 s64, s%d, 0x%x" % (sC, O_STRIDE))
        a("s_add_u32 s64, s64, 0x%x" % WS_O)
        a("s_mul_i32 s60, s%d, 10240" % sWn)
        a("s_add_u32 s64, s64, s60")
        a("s_mul_i32 s65, s75, 20480"); a("s_add_u32 s65, s65, s64")
        a("s_mul_i32 s66, s76, 20480"); a("s_add_u32 s66, s66, s64")
        for i in range(10):
            for j in range(2):
                base = 65 + j
                if i % 4 == 0 and i:
                    a("s_add_u32 s%d, s%d, 4096" % (base, base))
                a("buffer_load_dwordx4 %s, v6, %s, s%d offen offset:%d sc1" % (vr(XF + (i * 2 + j) * 4, 4), srd(SRD_WS), base, (i % 4) * 1024))
        for i in range(40): a("v_mov_b32 v%d, 0" % (self.ACC3 + i))
        a("s_mul_i32 s60, s%d, %d" % (sWn, 10 * 5120))
        a("v_add_u32 v7, s60, v6")
        for s in range(5): a("ds_read_b128 %s, v7 offset:%d" % (vr(WF0 + 4 * s, 4), s * 1024))
        for i in range(10):
            cur, nxt = (WF0, WF1) if i % 2 == 0 else (WF1, WF0)
            a("s_waitcnt vmcnt(%d) lgkmcnt(0)" % (2 * (9 - i)))
            k = 0
            for s in range(5):
                for j in range(2):
                    a("v_mfma_f32_16x16x32_bf16 %s, %s, %s, %s" % (vr(self.acc3(s, j), 4), vr(cur + 4 * s, 4), vr(XF + (i * 2 + j) * 4, 4), vr(self.acc3(s, j), 4)))
                    if i < 9 and j == 0:
                        a("ds_read_b128 %s, v7 offset:%d" % (vr(nxt + 4 * s, 4), ((i + 1) * 5 + s) * 1024))
        a("s_nop 7")
        self.exchange80(self.EX)
        for s in range(5):
            a("v_lshlrev_b32 v8, 16, v%d" % (XR + 2 * s));     a("v_add_f32 v%d, v%d, v8" % (self.acc3(s, 0), self.acc3(s, 0)))
            a("v_and_b32 v8, 0xffff0000, v%d" % (XR + 2 * s)); a("v_add_f32 v%d, v%d, v8" % (self.acc3(s, 0) + 1, self.acc3(s, 0) + 1))
            a("v_lshlrev_b32 v8, 16, v%d" % (XR + 2 * s + 1)); a("v_add_f32 v%d, v%d, v8" % (self.acc3(s, 0) + 2, self.acc3(s, 0) + 2))
            a("v_and_b32 v8, 0xffff0000, v%d" % (XR + 2 * s + 1)); a("v_add_f32 v%d, v%d, v8" % (self.acc3(s, 0) + 3, self.acc3(s, 0) + 3))
            a("v_cvt_pk_bf16_f32 v%d, v%d, v%d" % (self.HP + 2 * s, self.acc3(s, 0), self.acc3(s, 0) + 1))
            a("v_cvt_pk_bf16_f32 v%d, v%d, v%d" % (self.HP + 2 * s + 1, self.acc3(s, 0) + 2, self.acc3(s, 0) + 3))
        a("s_mul_i32 s64, s%d, 0x%x" % (sC, H_STRIDE))
        a("s_add_u32 s64, s64, 0x%x" % WS_H)
        a("s_mul_i32 s60, s75, 20480")
        a("s_add_u32 s64, s64, s60")
        a("s_mul_i32 s60, s%d, 5" % sNt); a("s_add_u32 s60, s60, s74"); a("s_lshr_b32 s60, s60, 1")
        a("s_lshl_b32 s65, s60, 10"); a("s_add_u32 s65, s65, s64")
        a("buffer_store_dwordx4 %s, v6, %s, s65 offen" % (vr(self.HP, 4), srd(SRD_WS)))
        a("buffer_store_dwordx4 %s, v6, %s, s65 offen offset:1024" % (vr(self.HP + 4, 4), srd(SRD_WS)))
        a("s_cmp_eq_u32 s74, 0")
        a("s_mov_b32 s60, 0x%x" % ((-1024 + 8) & 0xffffffff))
        a("s_cselect_b32 s60, 2048, s60")
        a("s_add_u32 s65, s65, s60")
        a("buffer_store_dwordx2 %s, v6, %s, s65 offen" % (vr(self.HP + 8, 2), srd(SRD_WS)))
        a("v_mov_b32 v9, 0x3f803f80")
        a("v_mov_b32 v10, 0"); a("v_mov_b32 v11, 0"); a("v_mov_b32 v12, 0"); a("v_mov_b32 v13, 0")
        for i in range(0, 10, 2):
            a("v_dot2_f32_bf16 v10, v%d, v9, v10" % (self.HP + i))
            a("v_dot2_f32_bf16 v11, v%d, v%d, v11" % (self.HP + i, self.HP + i))
            a("v_dot2_f32_bf16 v12, v%d, v9, v12" % (self.HP + i + 1))
            a("v_dot2_f32_bf16 v13, v%d, v%d, v13" % (self.HP + i + 1, self.HP + i + 1))
        a("v_add_f32 v10, v10, v12"); a("v_add_f32 v11, v11, v13")
        for sw in ("v_permlane32_swap_b32", "v_permlane16_swap_b32"):
            a("v_mov_b32 v12, v10"); a("v_mov_b32 v13, v11")
            a("%s v10, v12" % sw); a("%s v11, v13" % sw)
            a("v_add_f32 v10, v10, v12"); a("v_add_f32 v11, v11, v13")
        a("v_and_b32 v3, 15, v2"); a("v_lshlrev_b32 v3, 6, v3")
        a("s_lshl_b32 s60, s77, 6"); a("s_lshl_b32 s61, s%d, 3" % sNt)
        a("s_add_u32 s60, s60, s61"); a("s_add_u32 s60, s60, 0x%x" % WS_STAT2)
        a("s_mov_b64 s[62:63], exec"); a("s_mov_b64 exec, 0xffff")
        a("buffer_store_dwordx2 v[10:11], v3, %s, s60 offen" % srd(SRD_WS))
        a("s_mov_b64 exec, s[62:63]")
        a("s_waitcnt vmcnt(0)")

    def wo_prefetch(self):
        a = self.a
        a("s_lshr_b32 s64, s%d, 2" % sR)
        a("s_mul_i32 s64, s64, %d" % (100 * 1024))
        a("s_add_u32 s64, s64, 0x%x" % WS_WO)
        a("s_sub_u32 s65, s%d, 4" % sWave)
        a("s_lshl_b32 s65, s65, 10")
        a("v_lshlrev_b32 v3, 4, v2")
        Lp = a.newlabel('wop')
        a.label(Lp)
        a("s_mov_b32 m0, s65")
        a("s_add_u32 s60, s64, s65")
        a("buffer_load_dwordx4 v3, %s, s60 offen sc1 lds" % srd(SRD_WS))
        a("s_add_u32 s65, s65, 4096")
        a("s_cmp_lt_u32 s65, 102400")
        a("s_cbranch_scc1 %s" % Lp)

    def p4_ids(self):
        a = self.a
        a("s_and_b32 s%d, s%d, 1" % (sMt, sR))
        a("s_lshr_b32 s%d, s%d, 1" % (sNt, sR))
    def p4_producer_setup(self):
        a = self.a
        a("s_sub_u32 s63, s%d, 4" % sWave)
        a("v_lshlrev_b32 v16, 4, v2")
        a("v_lshrrev_b32 v3, 4, v2")
        a("s_lshl_b32 s60, s63, 2")
        a("v_add_u32 v4, s60, v3")
        a("v_lshlrev_b32 v5, 1, v4")
        a("v_and_b32 v6, 15, v2")
        a("v_xor_b32 v5, v5, v6")
        a("v_lshlrev_b32 v5, 4, v5")
        a("s_mov_b32 s61, 3456")
        a("v_mul_lo_u32 v4, v4, s61")
        a("v_add_u32 v17, v4, v5")
        a("s_mul_i32 s64, s%d, 0x%x" % (sC, H_STRIDE))
        a("s_add_u32 s64, s64, 0x%x" % WS_H)
        a("s_mul_i32 s60, s%d, %d" % (sMt, 8 * 20480))
        a("s_add_u32 s64, s64, s60")
        a("s_lshl_b32 s60, s63, 10")
        a("s_add_u32 s64, s64, s60")
        a("s_lshl_b32 s65, s%d, 8" % sNt)
        a("s_lshl_b32 s66, s63, 13")
        a("s_lshl_b32 s67, s63, 10")
        a("s_add_u32 s67, s67, 16384")
        a("s_mov_b32 s68, 0")
    def p4_issue_stage(self):
        a = self.a
        for q in range(8):
            a("s_add_u32 s60, s68, s66")
            if q: a("s_add_u32 s60, s60, %d" % (q * 1024))
            a("s_mov_b32 m0, s60")
            a("s_add_u32 s61, s64, %d" % (q * 20480))
            a("buffer_load_dwordx4 v16, %s, s61 offen sc1 lds" % srd(SRD_WS))
            a("s_add_u32 s60, s68, s67")
            if q: a("s_add_u32 s60, s60, %d" % (q * 2048))
            a("s_mov_b32 m0, s60")
            a("s_add_u32 s61, s65, %d" % (q * 8 * 3456))
            a("buffer_load_dwordx4 v17, %s, s61 offen lds" % srd(SRD_W))
        a("s_add_u32 s64, s64, 2048")
        a("s_add_u32 s65, s65, %d" % (64 * 3456))
        a("s_add_u32 s68, s68, 32768")
        a("s_cmp_eq_u32 s68, %d" % (5 * 32768))
        a("s_cselect_b32 s68, 0, s68")
    def p4_consumer_addr(self):
        a = self.a
        a("v_lshlrev_b32 v3, 4, v2")
        a("s_lshl_b32 s60, s%d, 12" % sWm)
        a("v_add_u32 v%d, s60, v3" % self.vX0)
        self.w_addr(16384, True)
    def p4_service(self):
        a = self.a
        for _ in range(7): a("s_barrier")
        a("s_lshl_b32 s60, s%d, 8" % sC)
        a("s_lshl_b32 s61, s%d, 7" % sMt)
        a("s_add_u32 s60, s60, s61")
        a("s_lshl_b32 s60, s60, 6")
        a("s_add_u32 s60, s60, 0x%x" % WS_STAT2)
        a("v_lshlrev_b32 v3, 7, v2")
        for i in range(8): a("buffer_load_dwordx4 %s, v3, %s, s60 offen offset:%d sc1" % (vr(16 + 4 * i, 4), srd(SRD_WS), i * 16))
        a("s_waitcnt vmcnt(0)")
        for rr in range(2):
            b = 16 + 16 * rr
            for i in range(1, 8):
                a("v_add_f32 v%d, v%d, v%d" % (b, b, b + 2 * i))
                a("v_add_f32 v%d, v%d, v%d" % (b + 1, b + 1, b + 2 * i + 1))
            self.finish_stats(b, b + 1, 12)
        a("v_mov_b32 v18, v32"); a("v_mov_b32 v19, v33")
        a("v_lshlrev_b32 v3, 4, v2")
        a("ds_write_b128 v3, v[16:19] offset:%d" % self.MISC_STATS)
        a("s_waitcnt lgkmcnt(0)")
        for _ in range(4): a("s_barrier")
        a("s_barrier")
    def p4_epilogue(self):
        a = self.a
        vcs, vst, vb = 80, 96, 104
        a("v_lshrrev_b32 v3, 4, v2"); a("v_lshlrev_b32 v3, 3, v3")
        a("s_lshl_b32 s64, s%d, 8" % sNt)
        a("s_lshl_b32 s60, s%d, 2" % sWn)
        a("s_lshl_b32 s61, s%d, 1" % sWm)
        for j in range(4):
            a("s_xor_b32 s62, s61, %d" % j)
            a("s_add_u32 s62, s62, s60")
            a("s_lshl_b32 s62, s62, 5")
            a("s_add_u32 s62, s62, s64")
            a("buffer_load_dwordx2 %s, v3, %s, s62 offen" % (vr(120 + 2 * j, 2), srd(SRD_B)))
        self.colsum_publish()
        a("s_barrier")
        self.ln_epilogue_load(vcs, vst)
        a("s_waitcnt vmcnt(0)")
        for j in range(4):
            a("v_lshlrev_b32 v%d, 16, v%d" % (vb + 4 * j, 120 + 2 * j))
            a("v_and_b32 v%d, 0xffff0000, v%d" % (vb + 4 * j + 1, 120 + 2 * j))
            a("v_lshlrev_b32 v%d, 16, v%d" % (vb + 4 * j + 2, 121 + 2 * j))
            a("v_and_b32 v%d, 0xffff0000, v%d" % (vb + 4 * j + 3, 121 + 2 * j))
        c = 0.7978845608028654
        A = -2.0 * c * 1.4426950408889634
        B = A * 0.044715
        a("s_mov_b32 s70, 0x%x" % f2u(B))
        a("s_mov_b32 s71, 0x%x" % f2u(A))
        a("v_mov_b32 v9, s71")
        T = 128
        P = 144
        for v in range(2):
            for mb in range(4):
                regs = [self.acc(2 * v + jj, mb) + e for jj in range(2) for e in range(4)]
                for i, r in enumerate(regs):
                    j = 2 * v + i // 4; e = i % 4
                    a("v_fma_f32 v%d, -v%d, v%d, v%d" % (r, vst + 2 * mb, vcs + 4 * j + e, r))
                for i, r in enumerate(regs):
                    j = 2 * v + i // 4; e = i % 4
                    a("v_fma_f32 v%d, v%d, v%d, v%d" % (r, r, vst + 2 * mb + 1, vb + 4 * j + e))
                for i, r in enumerate(regs): a("v_mul_f32 v%d, v%d, v%d" % (T + i, r, r))
                for i, r in enumerate(regs): a("v_fma_f32 v%d, v%d, s70, v9" % (T + i, T + i))
                for i, r in enumerate(regs): a("v_mul_f32 v%d, v%d, v%d" % (T + i, T + i, r))
                for i, r in enumerate(regs): a("v_exp_f32 v%d, v%d" % (T + i, T + i))
                for i, r in enumerate(regs): a("v_add_f32 v%d, 1.0, v%d" % (T + i, T + i))
                for i, r in enumerate(regs): a("v_rcp_f32 v%d, v%d" % (T + i, T + i))
                for i, r in enumerate(regs): a("v_mul_f32 v%d, v%d, v%d" % (r, r, T + i))
                d = P + (v * 4 + mb) * 4
                for i in range(4): a("v_cvt_pk_bf16_f32 v%d, v%d, v%d" % (d + i, regs[2 * i], regs[2 * i + 1]))
        a("v_lshlrev_b32 v3, 4, v2")
        a("s_mul_i32 s64, s%d, 0x%x" % (sC, G_STRIDE))
        a("s_add_u32 s64, s64, 0x%x" % WS_G)
        a("s_lshl_b32 s60, s%d, 3" % sMt); a("s_lshl_b32 s61, s%d, 2" % sWm); a("s_add_u32 s60, s60, s61")
        a("s_mul_i32 s60, s60, %d" % (54 * 1024)); a("s_add_u32 s64, s64, s60")
        a("s_lshl_b32 s65, s%d, 2" % sNt); a("s_lshl_b32 s60, s%d, 1" % sWn); a("s_add_u32 s65, s65, s60")
        for v in range(2):
            Ls = a.newlabel('p4s')
            a("s_xor_b32 s60, s%d, %d" % (sWm, v))
            a("s_add_u32 s60, s60, s65")
            a("s_cmp_ge_u32 s60, 54"); a("s_cbranch_scc1 %s" % Ls)
            a("s_lshl_b32 s60, s60, 10"); a("s_add_u32 s60, s60, s64")
            for mb in range(4):
                a("buffer_store_dwordx4 %s, v3, %s, s60 offen" % (vr(P + (v * 4 + mb) * 4, 4), srd(SRD_WS)))
                if mb < 3: a("s_add_u32 s60, s60, %d" % (54 * 1024))
            a.label(Ls)
        a("s_waitcnt vmcnt(0)")

    def p5_producer_setup(self):
        a = self.a
        a("s_sub_u32 s63, s%d, 4" % sWave)
        a("v_lshlrev_b32 v16, 4, v2")
        a("s_lshr_b32 s64, s%d, 2" % sR)
        a("s_mul_i32 s64, s64, %d" % (54 * 5120))
        a("s_add_u32 s64, s64, 0x%x" % WS_W2)
        a("s_mul_i32 s60, s63, %d" % (27 * 5120))
        a("s_add_u32 s64, s64, s60")
        a("s_mul_i32 s66, s63, 15360")
        a("s_mov_b32 s68, 0")
    def p5_issue_stage(self):
        a = self.a
        a("s_add_u32 s60, s68, s66")
        for q in range(15):
            a("s_mov_b32 m0, s60")
            if q < 14: a("s_add_u32 s60, s60, 1024")
            else: a("s_nop 0")
            a("buffer_load_dwordx4 v16, %s, s64 offen sc1 lds" % srd(SRD_WS))
            a("s_add_u32 s64, s64, 1024")
        a("s_add_u32 s68, s68, 30720")
        a("s_cmp_eq_u32 s68, %d" % (5 * 30720))
        a("s_cselect_b32 s68, 0, s68")
    def p5_consumer(self):
        a = self.a
        XF, WF0, WF1, BB = 80, 160, 180, 200
        self.tile80_ids()
        a("v_lshrrev_b32 v3, 4, v2"); a("v_lshlrev_b32 v3, 3, v3")
        for s in range(5):
            self.colblk(65, s)
            a("s_lshl_b32 s65, s65, 5")
            a("buffer_load_dwordx2 %s, v3, %s, s65 offen" % (vr(BB + 2 * s, 2), srd(SRD_B)))
        a("v_lshlrev_b32 v6, 4, v2")
        a("s_mul_i32 s64, s%d, 0x%x" % (sC, G_STRIDE))
        a("s_add_u32 s64, s64, 0x%x" % WS_G)
        a("s_mul_i32 s60, s%d, %d" % (sWn, 27 * 1024))
        a("s_add_u32 s64, s64, s60")
        a("s_mul_i32 s65, s75, %d" % (54 * 1024)); a("s_add_u32 s65, s65, s64")
        a("s_mul_i32 s66, s76, %d" % (54 * 1024)); a("s_add_u32 s66, s66, s64")
        def xload(buf):
            for st in range(3):
                for j in range(2):
                    a("buffer_load_dwordx4 %s, v6, %s, s%d offen offset:%d sc1" % (vr(XF + buf * 24 + (st * 2 + j) * 4, 4), srd(SRD_WS), 65 + j, st * 1024))
            a("s_add_u32 s65, s65, 3072"); a("s_add_u32 s66, s66, 3072")
        xload(0); xload(1)
        for i in range(40): a("v_mov_b32 v%d, 0" % (self.ACC3 + i))
        a("s_mul_i32 s60, s%d, 15360" % sWn)
        a("v_add_u32 v7, s60, v6")
        a("s_mov_b32 s67, 0")
        a("s_barrier")
        for s in range(5): a("ds_read_b128 %s, v7 offset:%d" % (vr(WF0 + 4 * s, 4), s * 1024))
        par = 0
        for k in range(9):
            buf = k % 3
            if k + 2 < 9: xload((k + 2) % 3)
            later = min(8, k + 2) - k
            a("s_waitcnt vmcnt(%d)" % (6 * later))
            for st in range(3):
                cur, nxt = (WF0, WF1) if par == 0 else (WF1, WF0)
                a("s_waitcnt lgkmcnt(0)")
                last = (k == 8 and st == 2)
                if st == 2 and not last:
                    a("s_add_u32 s67, s67, 1")
                    a("s_cmp_eq_u32 s67, 5")
                    a("s_mov_b32 s61, 30720")
                    a("s_cselect_b32 s61, 0x%x, s61" % ((-4 * 30720) & 0xffffffff))
                    a("s_cselect_b32 s67, 0, s67")
                    a("v_add_u32 v7, s61, v7")
                for s in range(5):
                    for j in range(2):
                        a("v_mfma_f32_16x16x32_bf16 %s, %s, %s, %s" % (vr(self.acc3(s, j), 4), vr(cur + 4 * s, 4), vr(XF + buf * 24 + (st * 2 + j) * 4, 4), vr(self.acc3(s, j), 4)))
                        if j == 0 and not last:
                            off = ((st + 1) * 5 + s) * 1024 if st < 2 else s * 1024
                            a("ds_read_b128 %s, v7 offset:%d" % (vr(nxt + 4 * s, 4), off))
                par ^= 1
            a("s_waitcnt lgkmcnt(0)") if k < 8 else None
            a("s_barrier")
        a("s_nop 7")
        self.exchange80(0)
        for s in range(5):
            r = self.acc3(s, 0)
            for (e, src, hi) in ((0, 2 * s, 0), (1, 2 * s, 1), (2, 2 * s + 1, 0), (3, 2 * s + 1, 1)):
                if hi:
                    a("v_and_b32 v8, 0xffff0000, v%d" % (self.HP + src)); a("v_and_b32 v9, 0xffff0000, v%d" % (BB + src))
                else:
                    a("v_lshlrev_b32 v8, 16, v%d" % (self.HP + src)); a("v_lshlrev_b32 v9, 16, v%d" % (BB + src))
                a("v_add_f32 v%d, v%d, v9" % (r + e, r + e))
                a("v_add_f32 v%d, v%d, v8" % (r + e, r + e))
            a("v_cvt_pk_bf16_f32 v%d, v%d, v%d" % (60 + 2 * s, r, r + 1))
            a("v_cvt_pk_bf16_f32 v%d, v%d, v%d" % (61 + 2 * s, r + 2, r + 3))
        a("s_mul_i32 s64, s%d, 2560" % sWave)
        a("s_add_u32 s64, s64, 32768")
        a("v_and_b32 v3, 15, v2"); a("v_mul_u32_u24 v3, 160, v3")
        a("v_lshrrev_b32 v4, 4, v2"); a("v_lshlrev_b32 v4, 3, v4")
        a("v_add_u32 v3, v3, v4"); a("v_add_u32 v3, s64, v3")
        for s in range(5):
            a("s_add_u32 s60, s74, %d" % s)
            if s == 4:
                a("s_cmp_eq_u32 s60, 5"); a("s_cselect_b32 s60, 0, s60")
            a("s_lshl_b32 s60, s60, 5")
            a("v_add_u32 v4, s60, v3")
            a("ds_write_b64 v4, %s" % vr(60 + 2 * s, 2))
        a("s_waitcnt lgkmcnt(0)")
        a("v_lshlrev_b32 v3, 4, v2"); a("v_add_u32 v3, s64, v3")
        for i in range(3): a("ds_read_b128 %s, v3 offset:%d" % (vr(72 + 4 * i, 4), i * 1024))
        a("s_lshl_b32 s60, s%d, 8" % sC); a("s_lshl_b32 s61, s75, 4"); a("s_add_u32 s60, s60, s61")
        a("s_mul_i32 s60, s60, 1280"); a("s_mul_i32 s61, s%d, 160" % sNt); a("s_add_u32 s60, s60, s61")
        for i in range(3):
            a("v_add_u32 v4, %d, v2" % (64 * i))
            a("v_mul_u32_u24 v5, 6554, v4"); a("v_lshrrev_b32 v5, 16, v5")
            a("v_mul_u32_u24 v8, 10, v5"); a("v_sub_u32 v4, v4, v8")
            a("v_mul_u32_u24 v5, 1280, v5"); a("v_lshlrev_b32 v4, 4, v4")
            a("v_add_u32 v%d, v5, v4" % (84 + i))
        a("s_waitcnt lgkmcnt(0)")
        a("buffer_store_dwordx4 v[72:75], v84, %s, s60 offen" % srd(SRD_OUT))
        a("buffer_store_dwordx4 v[76:79], v85, %s, s60 offen" % srd(SRD_OUT))
        a("s_mov_b32 exec_hi, 0")
        a("buffer_store_dwordx4 v[80:83], v86, %s, s60 offen" % srd(SRD_OUT))
        a("s_mov_b64 exec, -1")

    def nbar(self, n):
        for _ in range(n): self.a("s_barrier")

    def rflag_wait(self):
        a = self.a
        a("v_and_b32 v3, 15, v2"); a("v_lshlrev_b32 v3, 2, v3")
        a("s_mov_b32 s60, 0x%x" % WS_RFLAG)
        self.poll_ge(3, "s60", 4, 1)
    def xflag_wait(self):
        a = self.a
        Ls = a.newlabel('xfs')
        a("s_cmp_eq_u32 s%d, 0" % sC); a("s_cbranch_scc1 %s" % Ls)
        a("s_sub_u32 s60, s%d, 1" % sC); a("s_lshl_b32 s60, s60, 9"); a("s_add_u32 s60, s60, 0x%x" % WS_XFLAG)
        a("v_lshlrev_b32 v3, 2, v2")
        self.poll_ge(3, "s60", 4, 1)
        a("s_add_u32 s60, s60, 256")
        a("v_and_b32 v3, 15, v2"); a("v_lshlrev_b32 v3, 2, v3")
        self.poll_ge(3, "s60", 4, 1)
        a.label(Ls)

    def build(self):
        a = self.a
        SA = self.stop_after
        self.prologue()
        self.build_srd(SRD_B, 14, 1728 * 2)
        self.common_wave_ids()
        a("s_and_b32 s%d, s%d, 1" % (sMt, sR))
        a("s_lshr_b32 s%d, s%d, 1" % (sNt, sR))
        a("s_cmp_ge_u32 s%d, 30" % sR); a("s_cbranch_scc1 L_relay")
        a("s_cmp_ge_u32 s%d, 4" % sWave); a("s_cbranch_scc1 L_p1_np")
        self.p1_consumer()
        self.gemm_mainloop(10, 5, 32768, False, 'p1')
        if self.stamps:
            L = a.newlabel('st'); a("s_cmp_lg_u32 s%d, 0" % sWave); a("s_cbranch_scc1 %s" % L); self.stamp(16); a.label(L)
        self.p1_epilogue()
        a("s_branch L_p2")
        a.label("L_p1_np")
        a("s_cmp_ge_u32 s%d, 6" % sWave); a("s_cbranch_scc1 L_p1_sv")
        self.p1_producer_setup()
        self.producer_loop(self.p1_issue_stage, 10, 16, 'p1p')
        self.nbar(2)
        a("s_branch L_p2")
        a.label("L_p1_sv")
        a("s_cmp_eq_u32 s%d, 7" % sWave); a("s_cbranch_scc1 L_p1_sp")
        self.stamp(0)
        self.p1_service()
        self.stamp(2)
        a("s_branch L_p2")
        a.label("L_p1_sp")
        self.nbar(13)
        a("s_branch L_p2")
        a.label("L_relay")
        a("s_cmp_ge_u32 s%d, 4" % sWave); a("s_cbranch_scc1 L_rl_np")
        self.p1_consumer()
        a("s_barrier")
        a("s_branch L_rl_go")
        a.label("L_rl_np")
        a("s_cmp_lg_u32 s%d, 6" % sWave); a("s_cbranch_scc1 L_rl_ot")
        self.arrival_publish()
        a("s_barrier")
        self.flag_store(2, always_sc1=True)
        self.arrival_wait()
        a("s_branch L_rl_go")
        a.label("L_rl_ot")
        a("s_barrier")
        a.label("L_rl_go")
        self.relayout()
        a("s_cmp_lg_u32 s%d, 6" % sWave); a("s_cbranch_scc1 L_p2")
        self.rflag_store(1)
        a.label("L_p2")
        if SA < 2:
            a("s_branch L_end")
        a("s_cmp_lg_u32 s%d, 6" % sWave); a("s_cbranch_scc1 L_p2_a")
        self.rflag_wait()
        self.flags_wait(2)
        self.xflag_wait()
        self.stamp(3)
        a.label("L_p2_a")
        self.p2_ones_plane()
        a("s_barrier")
        self.p2_issue_kv(False)
        Lh = a.newlabel('nohalo')
        a("s_cmp_eq_u32 s%d, 0" % sC); a("s_cbranch_scc1 %s" % Lh)
        self.p2_issue_kv(True)
        a.label(Lh)
        self.p2_setup()
        Lw = a.newlabel('p2w'); Lw2 = a.newlabel('p2w2')
        a("s_cmp_lt_u32 s%d, 4" % sWave); a("s_cbranch_scc1 %s" % Lw)
        self.wo_prefetch()
        self.p2_setup2()
        a("s_waitcnt vmcnt(25) lgkmcnt(0)")
        a("s_branch %s" % Lw2)
        a.label(Lw)
        self.p2_setup2()
        a("s_waitcnt vmcnt(0) lgkmcnt(0)")
        a.label(Lw2)
        a("s_barrier")
        self.p2_main()
        a("s_barrier")
        if SA < 3:
            a("s_branch L_end")
        a("s_cmp_lg_u32 s%d, 6" % sWave); a("s_cbranch_scc1 L_p3_a")
        self.stamp(4)
        self.flag_store(3)
        self.flags_wait(3)
        self.stamp(5)
        a.label("L_p3_a")
        a("s_barrier")
        a("s_cmp_ge_u32 s%d, 4" % sWave); a("s_cbranch_scc1 L_p3_np")
        self.p3_consumer()
        a("s_branch L_p3_d")
        a.label("L_p3_np")
        a("s_barrier")
        a.label("L_p3_d")
        a("s_barrier")
        if SA < 4:
            a("s_branch L_end")
        a("s_cmp_lg_u32 s%d, 6" % sWave); a("s_cbranch_scc1 L_p4_a")
        self.stamp(6)
        self.flag_store(4)
        self.flags_wait(4)
        self.stamp(7)
        a.label("L_p4_a")
        a("s_barrier")
        self.p4_ids()
        a("s_cmp_ge_u32 s%d, 28" % sR); a("s_cbranch_scc1 L_p4_end")
        a("s_cmp_ge_u32 s%d, 4" % sWave); a("s_cbranch_scc1 L_p4_np")
        self.build_srd(SRD_B, 14, 1728 * 2)
        self.p4_consumer_addr()
        self.gemm_mainloop(10, 5, 32768, True, 'p4')
        self.p4_epilogue()
        a("s_branch L_p4_d")
        a.label("L_p4_np")
        a("s_cmp_ge_u32 s%d, 6" % sWave); a("s_cbranch_scc1 L_p4_sv")
        self.build_srd(SRD_W, 12, 640 * 3456)
        self.p4_producer_setup()
        self.producer_loop(self.p4_issue_stage, 10, 16, 'p4p')
        self.nbar(1)
        a("s_branch L_p4_d")
        a.label("L_p4_sv")
        a("s_cmp_eq_u32 s%d, 7" % sWave); a("s_cbranch_scc1 L_p4_sp")
        self.p4_service()
        a("s_branch L_p4_d")
        a.label("L_p4_sp")
        self.nbar(12)
        a.label("L_p4_d")
        a("s_barrier")
        a.label("L_p4_end")
        if SA < 5:
            a("s_branch L_end")
        a("s_cmp_lg_u32 s%d, 6" % sWave); a("s_cbranch_scc1 L_p5_a")
        self.stamp(8)
        self.flag_store(5)
        self.flags_wait(5)
        self.stamp(9)
        a.label("L_p5_a")
        a("s_barrier")
        a("s_cmp_ge_u32 s%d, 4" % sWave); a("s_cbranch_scc1 L_p5_np")
        self.build_srd(SRD_B, 18, 640 * 2)
        self.p5_consumer()
        if self.stamps:
            L = a.newlabel('st'); a("s_cmp_lg_u32 s%d, 0" % sWave); a("s_cbranch_scc1 %s" % L); self.stamp(10); a.label(L)
        a("s_branch L_end")
        a.label("L_p5_np")
        a("s_cmp_ge_u32 s%d, 6" % sWave); a("s_cbranch_scc1 L_p5_sv")
        self.p5_producer_setup()
        self.producer_loop(self.p5_issue_stage, 9, 15, 'p5p')
        self.nbar(1)
        a("s_branch L_end")
        a.label("L_p5_sv")
        self.nbar(11)
        a.label("L_end")
        a("s_endpgm")

HEADER = """; Kernarg layout (88 bytes): 0 A_x, 8 A_wqkv, 16 A_wo, 24 B_x, 32 B_w1, 40 B_b1, 48 B_w2, 56 B_b2, 64 d_out, 72 d_debug, 80 d_ws
; @launch grid=(256,1,1) block=(512,1,1) lds=163840
.amdgcn_target "amdgcn-amd-amdhsa--gfx950"
.text
.globl {name}
.p2align 8
.type {name},@function
{name}:
"""
FOOTER = """.section .rodata,"a"
.p2align 6
.amdhsa_kernel {name}
  .amdhsa_next_free_vgpr 256
  .amdhsa_next_free_sgpr 102
  .amdhsa_accum_offset 256
  .amdhsa_group_segment_fixed_size 0
  .amdhsa_kernarg_size 88
  .amdhsa_user_sgpr_count 2
  .amdhsa_user_sgpr_kernarg_segment_ptr 1
  .amdhsa_system_sgpr_workgroup_id_x 1
.end_amdhsa_kernel
"""

def generate(stop_after=99, stamps=False):
    g = Gen(stop_after, stamps)
    g.build()
    body = g.a.finalize()
    return HEADER.format(name=NAME) + body + FOOTER.format(name=NAME), g

if __name__ == "__main__":
    import argparse
    ap = argparse.ArgumentParser()
    ap.add_argument("--stop", type=int, default=99)
    ap.add_argument("--stamps", action="store_true")
    ap.add_argument("-o", default="k.s")
    args = ap.parse_args()
    txt, g = generate(args.stop, args.stamps)
    open(args.o, "w").write(txt)
    print("wrote", args.o, "lines", txt.count("\n"), "nops inserted", g.a.nops)
```
